```python
import torch

def _softmax(x, axis=-1):
    return torch.softmax(x, dim=axis)
def _gelu(x):
    return torch.nn.functional.gelu(x, approximate="tanh")
def _silu(x):
    return torch.nn.functional.silu(x)
def _sigmoid(x):
    return torch.sigmoid(x)
def _layernorm(x, axis=-1, eps=1e-5):
    m = x.mean(dim=axis, keepdim=True)
    v = x.var(dim=axis, keepdim=True, unbiased=False)
    return (x - m) / torch.sqrt(v + eps)
def _scatter_add(tgt, idx, src, axis=0):
    return tgt.clone().index_add_(axis, idx, src)
def _segment_sum(src, seg, n):
    out = torch.zeros((n,) + src.shape[1:], dtype=src.dtype)
    return out.index_add_(0, seg, src)
def _pad(x, pw):
    flat = tuple(v for pair in reversed(pw) for v in pair)
    return torch.nn.functional.pad(x, flat)

kernel_name = 'concat_heads__mha_block_cached__mha_block_cached__near_ridge'

def setup_inputs():

    _w = (lambda a: (lambda t: t.to(torch.bfloat16) if t.is_floating_point() else t)(torch.as_tensor(a)))
    def _A_setup():
        B, Sq, D = 16, 160, 448
        H, Sk, Dh = 16, 512, 256
        return {
            "x": _w((lambda *s: torch.randn(*s, dtype=torch.bfloat16) * 0.8)(B, Sq, D)),
            "k_cache": _w((lambda *s: torch.randn(*s, dtype=torch.bfloat16) * 0.8)(B, H, Sk, Dh)),
            "v_cache": _w((lambda *s: torch.randn(*s, dtype=torch.bfloat16) * 0.05)(B, H, Sk, Dh)),
            "wq": _w((lambda *s: torch.randn(*s, dtype=torch.bfloat16) * 0.8)(D, H * Dh) * (D ** -0.5)),
            "wo": _w((lambda *s: torch.randn(*s, dtype=torch.bfloat16) * 0.05)(H * Dh, D) * ((H * Dh) ** -0.5)),
        }
    _A_in = _A_setup()

    def _B_setup():
        B, Sq, D = 16, 160, 448
        H, Sk, Dh = 16, 512, 256
        return {
            "x": _w((lambda *s: torch.randn(*s, dtype=torch.bfloat16) * 0.8)(B, Sq, D)),
            "k_cache": _w((lambda *s: torch.randn(*s, dtype=torch.bfloat16) * 0.8)(B, H, Sk, Dh)),
            "v_cache": _w((lambda *s: torch.randn(*s, dtype=torch.bfloat16) * 0.05)(B, H, Sk, Dh)),
            "wq": _w((lambda *s: torch.randn(*s, dtype=torch.bfloat16) * 0.8)(D, H * Dh) * (D ** -0.5)),
            "wo": _w((lambda *s: torch.randn(*s, dtype=torch.bfloat16) * 0.05)(H * Dh, D) * ((H * Dh) ** -0.5)),
        }
    _B_in = _B_setup()

    return {
        "A_x": _A_in["x"],
        "A_k_cache": _A_in["k_cache"],
        "A_v_cache": _A_in["v_cache"],
        "A_wq": _A_in["wq"],
        "A_wo": _A_in["wo"],
        "B_x": _B_in["x"],
        "B_k_cache": _B_in["k_cache"],
        "B_v_cache": _B_in["v_cache"],
        "B_wq": _B_in["wq"],
        "B_wo": _B_in["wo"],
    }

def reference(A_x, A_k_cache, A_v_cache, A_wq, A_wo, B_x, B_k_cache, B_v_cache, B_wq, B_wo):
    def _A_ref(x, k_cache, v_cache, wq, wo):
        B, Sq, D = x.shape
        H, Dh = 16, 256
        q = (lambda x, *d: x.permute(*d))((x @ wq).reshape(B, Sq, H, Dh), 0, 2, 1, 3)
        scores = torch.einsum("bhqd,bhkd->bhqk", q, k_cache) * (Dh ** -0.5)
        p = _softmax(scores, axis=-1)
        o = torch.einsum("bhqk,bhkd->bhqd", p, v_cache)
        return (lambda x, *d: x.permute(*d))(o, 0, 2, 1, 3).reshape(B, Sq, H * Dh) @ wo

    def _B_ref(x, k_cache, v_cache, wq, wo):
        B, Sq, D = x.shape
        H, Dh = 16, 256
        q = (lambda x, *d: x.permute(*d))((x @ wq).reshape(B, Sq, H, Dh), 0, 2, 1, 3)
        scores = torch.einsum("bhqd,bhkd->bhqk", q, k_cache) * (Dh ** -0.5)
        p = _softmax(scores, axis=-1)
        o = torch.einsum("bhqk,bhkd->bhqd", p, v_cache)
        return (lambda x, *d: x.permute(*d))(o, 0, 2, 1, 3).reshape(B, Sq, H * Dh) @ wo

    a = _A_ref(A_x, A_k_cache, A_v_cache, A_wq, A_wo)
    b = _B_ref(B_x, B_k_cache, B_v_cache, B_wq, B_wo)
    return torch.concatenate([a, b], axis=-1)
```

```python
class Reg:
    def __init__(s, k, lo, n=1):
        s.k, s.lo, s.n = k, lo, n
    @property
    def t(s):
        return f"{s.k}{s.lo}" if s.n == 1 else f"{s.k}[{s.lo}:{s.lo+s.n-1}]"
    @property
    def set(s):
        return {f"{s.k}{i}" for i in range(s.lo, s.lo+s.n)}
    def __getitem__(s, i):
        assert 0 <= i < s.n
        return Reg(s.k, s.lo+i, 1)
    def sub(s, i, n):
        assert 0 <= i and i+n <= s.n
        return Reg(s.k, s.lo+i, n)
    def __str__(s): return s.t
def V(lo, n=1): return Reg('v', lo, n)
def A(lo, n=1): return Reg('a', lo, n)
def S(lo, n=1): return Reg('s', lo, n)
def regset(*xs):
    r = set()
    for x in xs:
        if isinstance(x, Reg): r |= x.set
        elif isinstance(x, str) and x in ('m0', 'vcc', 'scc', 'exec'): r.add(x)
    return r
def T(x):
    if isinstance(x, Reg): return x.t
    if isinstance(x, float): return repr(x)
    if isinstance(x, int): return str(x) if -16 <= x <= 64 else hex(x & 0xffffffff)
    return x

class I:
    __slots__ = ('text', 'kind', 'rd', 'wr', 'tag', 'cost', 'crd', 'need_vm', 'need_lds', 'wide', 'prod')
    def __init__(s, text, kind, rd=(), wr=(), tag=None, cost=1, crd=(), need_vm=None, need_lds=None, wide=False):
        s.text, s.kind, s.rd, s.wr, s.tag, s.cost = text, kind, set(rd), set(wr), tag, cost
        s.crd = set(crd); s.need_vm = need_vm; s.need_lds = need_lds; s.wide = wide; s.prod = []

def mfma(D, Aa, Bb, C):
    c = C.t if isinstance(C, Reg) else "0"
    return I(f"v_mfma_f32_16x16x32_bf16 {D}, {Aa}, {Bb}, {c}", 'mfma', rd=regset(Aa, Bb), wr=D.set,
             crd=regset(C), cost=2)
def off(o):
    assert 0 <= o < 65536, o
    return f" offset:{o}" if o else ""
def ds_r128(d, a, o=0, tag=None, need_vm=None):
    return I(f"ds_read_b128 {d}, {a}{off(o)}", 'dsr', rd=a.set, wr=d.set, tag=tag, need_vm=need_vm)
def ds_rtr(d, a, o=0, tag=None, need_vm=None):
    return I(f"ds_read_b64_tr_b16 {d}, {a}{off(o)}", 'dsr', rd=a.set, wr=d.set, tag=tag, need_vm=need_vm)
def ds_w128(a, s, o=0): return I(f"ds_write_b128 {a}, {s}{off(o)}", 'dsw', rd=regset(a, s))
def ds_w32(a, s, o=0): return I(f"ds_write_b32 {a}, {s}{off(o)}", 'dsw', rd=regset(a, s))
def ds_maxf(a, s, o=0): return I(f"ds_max_f32 {a}, {s}{off(o)}", 'dsw', rd=regset(a, s))
def voffs(o):
    assert 0 <= o < 4096, o
    return f" offset:{o}" if o else ""
def dma(voff, srd, soff, imm=0, fl="nt", tag=None, need_lds=None):
    f = f" {fl}" if fl else ""
    return I(f"buffer_load_dwordx4 {voff}, {srd}, {T(soff)} offen{voffs(imm)}{f} lds", 'dma',
             rd=regset(voff, srd, soff, 'm0'), tag=tag, need_lds=need_lds)
def bstore4(src, voff, srd, soff, imm=0, fl="", tag=None):
    f = f" {fl}" if fl else ""
    return I(f"buffer_store_dwordx4 {src}, {voff}, {srd}, {T(soff)} offen{voffs(imm)}{f}", 'vst',
             rd=regset(src, voff, srd, soff), tag=tag, wide=True)
def bstore(n, src, voff, srd, soff, imm=0, fl="", tag=None):
    f = f" {fl}" if fl else ""
    nm = {1: "dword", 2: "dwordx2", 4: "dwordx4"}[n]
    return I(f"buffer_store_{nm} {src}, {voff}, {srd}, {T(soff)} offen{voffs(imm)}{f}", 'vst',
             rd=regset(src, voff, srd, soff), tag=tag, wide=(n == 4))
def bload(n, dst, voff, srd, soff, imm=0, fl="", tag=None):
    f = f" {fl}" if fl else ""
    nm = {1: "dword", 2: "dwordx2", 4: "dwordx4"}[n]
    return I(f"buffer_load_{nm} {dst}, {voff}, {srd}, {T(soff)} offen{voffs(imm)}{f}", 'vld',
             rd=regset(voff, srd, soff), wr=dst.set, tag=tag)
TRANS = ('v_exp_f32', 'v_rcp_f32', 'v_log_f32', 'v_rsq_f32', 'v_sqrt_f32')
def v(op, d, *src, rdw=False):
    kind = 'trans' if op in TRANS else ('perm' if op.startswith('v_permlane') else 'valu')
    rd = regset(*src); wr = regset(d)
    if kind == 'perm': rd |= regset(d); wr |= regset(*src)
    if rdw: rd |= regset(d)
    if op in ('v_readfirstlane_b32',): kind = 'rfl'
    return I(f"{op} {T(d)}, " + ", ".join(T(x) for x in src), kind, rd=rd, wr=wr, cost=2 if kind == 'trans' else 1)
def s(op, d, *src):
    wr = regset(d) | {'scc'}
    if op.startswith('s_cmp'):
        return I(f"{op} {T(d)}, " + ", ".join(T(x) for x in src), 'salu', rd=regset(d, *src), wr={'scc'})
    if op in ('s_mov_b32', 's_mov_b64', 's_mul_i32', 's_cselect_b32'): wr = regset(d)
    return I(f"{op} {T(d)}, " + ", ".join(T(x) for x in src), 'salu', rd=regset(*src), wr=wr)
def raw(text, kind='salu', rd=(), wr=()): return I(text, kind, rd=rd, wr=wr)
def barrier(): return I("s_barrier", 'barrier')
def waitvm(tag): return I("", 'waitvm', need_vm=tag, cost=1)
def waitlds(tag=None): return I("", 'waitlds', need_lds=tag if tag is not None else 'ALL', cost=1)

VALUK = ('valu', 'trans', 'perm', 'rfl')
class Emitter:
    def __init__(s):
        s.lines = []; s.lg = []; s.vm = []; s.hist = []
        s.lastw = {}; s.pos = 0; s.sites = None; s.forced = None; s.site_i = 0; s.count = {}
    def out(s, text, ws=1):
        s.lines.append(text); s.pos += ws
    def label(s, name):
        s.lines.append(name + ":")
    def comment(s, t): s.lines.append("; " + t)
    def _wait_lg(s, idx):
        n = len(s.lg) - 1 - idx
        assert n <= 15 or True
        s.out(f"s_waitcnt lgkmcnt({min(n, 15)})")
        n = min(n, 15)
        s.lg = s.lg[len(s.lg)-n:] if n else []
    def _wait_vm_n(s, n):
        assert n <= 63
        s.out(f"s_waitcnt vmcnt({n})")
        if n < len(s.vm): s.vm = s.vm[len(s.vm)-n:] if n else []
    def _need_vm(s, tag):
        idx = -1
        for i, e in enumerate(s.vm):
            if tag == 'ALL' or e['tag'] == tag: idx = i
        n = None if idx < 0 else len(s.vm) - 1 - idx
        if s.sites is not None:
            s.sites.append(n)
        if s.forced is not None:
            fn = s.forced[s.site_i]; s.site_i += 1
            assert n is None or (fn is not None and fn <= n), (tag, n, fn)
            n = fn
        if n is not None: s._wait_vm_n(n)
    def emit(s, ins):
        if isinstance(ins, (list, tuple)):
            for x in ins: s.emit(x)
            return
        if ins.need_vm is not None: s._need_vm(ins.need_vm)
        if ins.need_lds is not None:
            idx = -1
            for i, e in enumerate(s.lg):
                if ins.need_lds == 'ALL' or e['tag'] == ins.need_lds: idx = i
            if idx >= 0: s._wait_lg(idx)
        if ins.kind in ('waitvm', 'waitlds'): return
        for p in ins.prod:
            for r in (p.wr & ins.rd):
                assert s.lastw.get(r) is p, ("clobbered", r, ins.text, p.text, s.lastw.get(r).text if s.lastw.get(r) else None)
        for r in ins.wr: s.lastw[r] = ins
        touch = ins.rd | ins.wr | ins.crd
        idx = -1
        for i, e in enumerate(s.lg):
            if e['dst'] & touch: idx = i
        if idx >= 0: s._wait_lg(idx)
        idx = -1
        for i, e in enumerate(s.vm):
            if e['dst'] & touch: idx = i
        if idx >= 0: s._wait_vm_n(len(s.vm) - 1 - idx)
        need = 0
        for (p, ppos) in s.hist:
            d = s.pos - ppos - 1
            r = 0
            k = ins.kind
            if p.kind == 'mfma':
                if k == 'mfma':
                    if p.wr & ins.rd: r = 8
                    if p.wr & ins.crd and p.wr != ins.crd: r = max(r, 6)
                    if p.wr & ins.wr and p.wr != ins.crd: r = max(r, 8)
                elif k in VALUK:
                    if p.wr & (ins.rd | ins.wr): r = 8
                    if p.crd & ins.wr: r = max(r, 3)
                elif k in ('dsr', 'dsw', 'dma', 'vst', 'vld'):
                    if p.wr & (ins.rd | ins.wr): r = 8
            elif p.kind in VALUK:
                if k == 'mfma' and p.wr & (ins.rd | ins.crd): r = 2
                if p.kind == 'trans' and k in ('valu', 'perm', 'rfl') and p.wr & ins.rd: r = max(r, 1)
                if k == 'perm' and p.wr & ins.rd: r = max(r, 2)
                if k == 'rfl' and p.wr & ins.rd: r = max(r, 1)
                sw = {x for x in p.wr if x[0] == 's' or x == 'vcc'}
                if sw:
                    if k in ('dma', 'vst', 'vld') and sw & ins.rd: r = max(r, 5)
                    if k in VALUK and sw & ins.rd: r = max(r, 2)
            elif p.kind == 'salu':
                if 'm0' in p.wr and k == 'dma': r = 1
            elif p.kind == 'vst' and p.wide:
                if p.rd & ins.wr: r = 2
            need = max(need, r - d)
        if need > 0:
            s.out(f"s_nop {need-1}", need)
        s.out(ins.text)
        s.count[ins.kind] = s.count.get(ins.kind, 0) + 1
        s.hist.append((ins, s.pos - 1))
        s.hist = [(p, q) for (p, q) in s.hist if s.pos - q < 12]
        if ins.kind == 'dsr': s.lg.append({'dst': ins.wr, 'tag': ins.tag})
        elif ins.kind == 'dsw': s.lg.append({'dst': set(), 'tag': 'W'})
        elif ins.kind == 'dma' or ins.kind == 'vst': s.vm.append({'dst': set(), 'tag': ins.tag})
        elif ins.kind == 'vld': s.vm.append({'dst': ins.wr, 'tag': ins.tag})
        if len(s.lg) > 15:
            s.lg = s.lg[-15:] if False else s.lg
        assert len(s.vm) <= 63, "too many outstanding vm ops"
    def settle(s):
        s.out("s_nop 7", 8); s.hist = []

def run_phase(E, M, fix, bg=(), cap=2):
    n = len(M)
    load = [sum(x.cost for x in fix.get(g, [])) for g in range(n)]
    extra = [[] for _ in range(n)]
    for (g0, g1, items) in bg:
        total = sum(x.cost for x in items)
        c = cap
        while sum(max(0, c - load[g]) for g in range(g0, g1+1)) < total: c += 0.25
        free = [max(0, c - load[g]) for g in range(g0, g1+1)]
        scale = total / max(sum(free), 1e-9)
        budget = 0.0; k = 0
        for gi, g in enumerate(range(g0, g1+1)):
            budget += free[gi]*scale
            while k < len(items) and (budget >= items[k].cost - 1e-6 or (g == g1)):
                extra[g].append(items[k]); budget -= items[k].cost; load[g] += items[k].cost; k += 1
        assert k == len(items)
    E.emit(fix.get(-1, []))
    for g in range(n):
        E.emit(M[g])
        E.emit(fix.get(g, []))
        E.emit(extra[g])

def link(L):
    prods = []
    for x in L:
        x.prod = list(prods)
        if x.kind == 'salu':
            prods = [p for p in prods if not (p.wr - {'scc'}) <= x.wr] + [x]
    for x in L:
        x.prod = [p for p in x.prod if (p.wr - {'scc'}) & x.rd]
    return L
```

```python
import sys, math
sys.path.insert(0, "work")
from asmlib import *

NAME = "concat_heads__mha_block_cached__mha_block_cached__near_ridge"
OPT = dict(out="", stamp=False, kvfl="nt", wfl="nt", xfl="nt", parkst="", parkld="", partst="", redld="", dbg=0)
for a in sys.argv[1:]:
    if "=" in a:
        k, val = a.split("=", 1)
        OPT[k] = type(OPT[k])(int(val)) if isinstance(OPT[k], (bool, int)) else val

HALF = 40960
RING0 = 81920
MSTAT = 147456
SSTAT = MSTAT + 1024
LDS_BYTES = SSTAT + 4*768
PART_SZ = 143360
PARK0 = 256*PART_SZ
PARK_SZ = 163840
STAMP0 = PARK0 + 256*PARK_SZ
WS_BYTES = 287703040

sX, sWQ, sK, sVV, sWO, sWS = S(4, 4), S(8, 4), S(12, 4), S(16, 4), S(20, 4), S(24, 4)
sW, sRING, sHEAD, sT, sT2 = S(32), S(33), S(34), S(35), S(36)
sCOL = [S(40+i) for i in range(4)]
sNX = [S(44+i) for i in range(4)]
sVH, sC, sPARK, sPART, sPAR, sWL = S(48), S(49), S(50), S(51), S(52), S(53)
sPKW, sPKQ, sLDW = S(54), S(55), S(56)
sSTAMP = S(58)
vL16, vL16b = V(1), V(2)
vKA = [V(3), V(4)]
vQA = [V(5), V(6)]
vPW = V(7)
vVA = [V(8+i) for i in range(4)]
vKO = [V(12+i) for i in range(4)]
vVO = [V(16+i) for i in range(4)]
vSTW, vSTR = V(20), V(21)
vXO = V(22); vXA = [V(23), V(24), V(25), V(26)]; vWQO = [V(27+i) for i in range(4)]; vWQA = [V(31), V(32)]; vQW = V(33)
vMX = V(24, 12)
vSUM = V(36, 12)
vTMP = V(48, 16)
vWOA = [V(24+i) for i in range(7)]
ACCV0, NACCV = 64, 48
def acc_tile(idx):
    return V(ACCV0+4*idx, 4) if idx < NACCV else A(4*(idx-NACCV), 4)
def o_tile(t, j):
    idx = ((t >> 1)*10 + j)*2 + (t & 1)
    return V(ACCV0+4*idx, 4) if idx < 20 else A(128+4*(idx-20), 4)
aBIG = [[A(128+32*b+4*i, 4) for i in range(8)] for b in range(2)]
aPV = [[A(208+16*b+4*i, 4) for i in range(4)] for b in range(2)]
aB = [A(240+4*i, 4) for i in range(4)]
LA = 3

stamp_n = [0]
def stamp(E):
    if not OPT['stamp']: return
    r = 60 + 2*stamp_n[0]; stamp_n[0] += 1
    assert r < 98
    E.emit(waitlds())
    E.out(f"s_memtime s[{r}:{r+1}]")
    E.out("s_waitcnt lgkmcnt(0)")

def dma_group(kind, gi, slot, need_lds=None):
    L = [s('s_add_u32', 'm0', sRING, slot*4096)]
    L[0].wr.add('m0')
    if kind == 'Wq':
        L.append(s('s_mov_b32', sT, (gi >> 1)*32*8192 + (gi & 1)*512)); so, srd, vo, fl = sT, sWQ, vWQO, OPT['wfl']
    elif kind == 'K':
        hf, it, pr = gi >> 3, (gi >> 1) & 3, gi & 1
        L.append(s('s_add_u32', sT, sCOL[it], (256*hf + 128*pr)*512)); so, srd, vo, fl = sT, sK, vKO, OPT['kvfl']
    elif kind == 'V':
        L.append(s('s_add_u32', sT, sVH, gi*16384)); so, srd, vo, fl = sT, sVV, vVO, OPT['kvfl']
    elif kind == 'nx':
        so, srd, vo, fl = sNX[gi], sK, vKO, OPT['kvfl']
    elif kind == 'Wo':
        L.append(s('s_mov_b32', sT, wo_soff(gi))); so, srd, vo, fl = sT, sK, vKO, OPT['wfl']
    for k in range(4):
        L.append(dma(vo[k], srd, so, k*1024, fl, tag=(kind, gi), need_lds=need_lds if k == 0 else None))
    return link(L)
def wo_soff(gi):
    ks, hh = gi >> 1, gi & 1
    ch, w2 = ks >> 2, ks & 3
    head, u = 1 - (ch >> 1), ch & 1
    return (head*256 + 64*w2 + 32*u + 16*hh)*896

def place(fix, g, items):
    fix.setdefault(g, []).extend(items if isinstance(items, list) else [items])

def window(fix, g0, glen, reads, dmas, rgaps, dgaps):
    for r, g in zip(reads, rgaps): place(fix, g0+g, r)
    if dmas:
        ns = len(dmas) - 4
        place(fix, g0+dgaps[0], dmas[:ns])
        for d, g in zip(dmas[ns:], dgaps[1:]): place(fix, g0+g, d)

def rd_wq(gi, buf):
    head, slot = gi & 1, gi & 3
    L = []
    for u in range(2):
        for e in range(2):
            d = buf[head*4 + 2*u + e]
            for h2 in range(2):
                L.append(ds_rtr(d.sub(2*h2, 2), vWQA[u], slot*4096 + 8*e + 512*h2, tag=('rWq', gi),
                                need_vm=('Wq', gi) if not L else None))
    return L
def rd_k(gi, buf):
    pr, slot = gi & 1, gi & 3
    L = []
    for u in range(2):
        for t2 in range(2):
            L.append(ds_r128(buf[u*4 + 2*pr + t2], vKA[u], slot*4096 + t2*2048, tag=('rK', gi),
                             need_vm=('K', gi) if not L else None))
    return L
def rd_v(gi, buf):
    slot = gi & 3
    L = []
    for t in range(4):
        for h2 in range(2):
            L.append(ds_rtr(buf[t].sub(2*h2, 2), vVA[t], slot*4096 + 2048*h2, tag=('rV', gi),
                            need_vm=('V', gi) if not L else None))
    return L
def rd_wo(gi, buf):
    hh, slot = gi & 1, gi & 3
    L = []
    for t in range(7):
        L.append(ds_rtr(buf[t].sub(2*hh, 2), vWOA[t], slot*4096, tag=('rWo', gi),
                        need_vm=('Wo', gi) if not L else None))
    return L

def x_dma(p):
    L = []
    for k in range(5):
        a = s('s_add_u32', 'm0', sWL, (p & 3)*20480 + k*4096); a.wr.add('m0')
        L.append(link([a, s('s_mov_b32', sT2, p*128 + k*28672), dma(vXO, sX, sT2, 0, OPT['xfl'], tag=('x', p))]))
    return L
def reload_dma(sbase, src_off, half, tag):
    L = []
    for k0 in (0, 4, 8):
        a = s('s_add_u32', 'm0', sLDW, half*HALF + k0*1024); a.wr.add('m0')
        grp = [a, s('s_add_u32', sT2, sbase, src_off + k0*1024)]
        for k in range(min(4, 10-k0)):
            grp.append(dma(vL16, sWS, sT2, k*1024, OPT['parkld'], tag=tag))
        L.append(link(grp))
    return L

def get8(tiles, tmp):
    if tiles[0].k == 'v':
        assert tiles[1].lo == tiles[0].lo + 4
        return [], V(tiles[0].lo, 8)
    pre = [v('v_accvgpr_read_b32', tmp[i], tiles[i >> 2][i & 3]) for i in range(8)]
    return pre, tmp
def pack8(r8):
    return [v('v_cvt_pk_bf16_f32', r8[i], r8[2*i], r8[2*i+1]) for i in range(4)]

def prologue(E):
    e = E.emit
    E.out("s_cmp_ge_u32 s2, 256"); E.out("s_cbranch_scc0 L_main_go"); E.out("s_endpgm"); E.label("L_main_go")
    E.out("s_load_dwordx16 s[60:75], s[0:1], 0")
    E.out("s_load_dwordx4 s[76:79], s[0:1], 64")
    E.out("s_load_dwordx2 s[80:81], s[0:1], 96")
    e(v('v_lshrrev_b32', V(2), 6, V(0)))
    e(v('v_and_b32', V(0), 63, V(0)))
    e(v('v_readfirstlane_b32', sW, V(2)))
    ln = V(0)
    t0, t1, t2, t3 = V(48), V(49), V(50), V(51)
    q, g = V(52), V(53)
    e(v('v_lshlrev_b32', vL16, 4, ln))
    e(v('v_add_u32', vL16b, HALF, vL16))
    e(v('v_and_b32', q, 15, ln)); e(v('v_lshrrev_b32', g, 4, ln))
    sj, sn, sblk, shp, sb = S(82), S(83), S(84), S(85), S(86)
    e(s('s_and_b32', sj, S(2), 7)); e(s('s_lshr_b32', sn, S(2), 3))
    e(s('s_lshr_b32', sblk, sj, 2)); e(s('s_and_b32', shp, sj, 3)); e(s('s_lshl_b32', shp, shp, 1))
    e(s('s_lshr_b32', sT, sn, 4)); e(s('s_add_u32', shp, shp, sT)); e(s('s_and_b32', sb, sn, 15))
    e(s('s_and_b32', sPAR, sn, 1)); e(s('s_lshl_b32', sPAR, sPAR, 1))
    e(s('s_lshl_b32', sRING, sW, 14)); e(s('s_add_u32', sRING, sRING, RING0))
    e(s('s_lshl_b32', sWL, sW, 10))
    e(s('s_mul_i32', sLDW, sW, 10240))
    e(s('s_mov_b32', sHEAD, 0)); e(s('s_mov_b32', sVH, 0))
    e(s('s_mov_b32', sC, 0x3DB8AA3B))
    e(v('v_lshrrev_b32', t0, 1, q)); e(v('v_xor_b32', t0, t0, g)); e(v('v_lshlrev_b32', t0, 4, t0))
    e(v('v_lshl_add_u32', vXA[0], q, 7, t0))
    e(v('v_xor_b32', vXA[1], 64, vXA[0]))
    e(v('v_add_u32', vXA[2], HALF, vXA[0])); e(v('v_add_u32', vXA[3], HALF, vXA[1]))
    e(v('v_add_u32', vKA[0], sRING, vXA[0])); e(v('v_add_u32', vKA[1], sRING, vXA[1]))
    r8, ch = V(54), V(55)
    e(v('v_lshrrev_b32', r8, 3, ln)); e(v('v_and_b32', ch, 7, ln))
    e(s('s_and_b32', sT, sW, 1)); e(s('s_lshl_b32', sT2, sT, 2))
    e(v('v_lshrrev_b32', t0, 1, r8)); e(v('v_xor_b32', t0, t0, ch))
    e(v('v_xor_b32', t1, sT2, t0)); e(v('v_lshlrev_b32', t1, 4, t1))
    e(v('v_mul_u32_u24', t2, 896, r8)); e(v('v_add_u32', t1, t1, t2))
    e(s('s_mul_i32', S(87), sW, 7168)); e(v('v_add_u32', vXO, S(87), t1))
    e(v('v_lshlrev_b32', t1, 4, t0)); e(v('v_lshl_add_u32', t1, r8, 9, t1))
    e(s('s_lshl_b32', S(87), sW, 14)); e(v('v_add_u32', vKO[0], S(87), t1))
    e(v('v_xor_b32', t1, 64, vKO[0])); e(v('v_add_u32', vKO[1], 3072, t1))
    e(v('v_add_u32', vKO[2], 6144, vKO[0])); e(v('v_add_u32', vKO[3], 9216, t1))
    e(v('v_and_b32', t1, 6, r8)); e(v('v_xor_b32', t1, t1, ch)); e(v('v_lshlrev_b32', t1, 4, t1))
    e(v('v_lshl_add_u32', t1, r8, 9, t1))
    e(s('s_lshl_b32', S(87), sW, 7)); e(v('v_add_u32', vVO[0], S(87), t1))
    for k in range(1, 4): e(v('v_add_u32', vVO[k], 3072*k, vVO[0]))
    e(v('v_and_b32', t1, 2, r8)); e(v('v_lshlrev_b32', t1, 1, t1)); e(v('v_xor_b32', t1, t1, ch))
    e(v('v_lshlrev_b32', t1, 4, t1)); e(v('v_lshl_add_u32', t1, r8, 13, t1))
    e(v('v_add_u32', vWQO[0], S(87), t1))
    for k in range(1, 4): e(v('v_add_u32', vWQO[k], 64512*k, vWQO[0]))
    r, cc = V(56), V(57)
    e(v('v_lshrrev_b32', r, 2, q)); e(v('v_and_b32', cc, 3, ln))
    e(v('v_and_b32', t1, 2, r)); e(v('v_lshlrev_b32', t1, 1, t1)); e(v('v_xor_b32', t1, t1, cc))
    e(v('v_lshlrev_b32', t1, 4, t1)); e(v('v_lshl_add_u32', t1, r, 7, t1)); e(v('v_lshl_add_u32', t1, g, 10, t1))
    e(v('v_add_u32', vWQA[0], sRING, t1)); e(v('v_xor_b32', vWQA[1], 64, vWQA[0]))
    e(v('v_and_b32', t1, 1, g)); e(v('v_lshl_add_u32', t1, t1, 2, r))
    e(v('v_lshrrev_b32', t2, 1, t1)); e(v('v_lshlrev_b32', t2, 5, t2))
    e(v('v_lshl_add_u32', t2, t1, 7, t2)); e(v('v_lshl_add_u32', t2, cc, 3, t2))
    e(v('v_lshrrev_b32', t3, 1, g)); e(v('v_lshl_add_u32', t2, t3, 10, t2))
    e(v('v_add_u32', vVA[0], sRING, t2))
    for t in range(1, 4): e(v('v_xor_b32', vVA[t], 32*t, vVA[0]))
    e(s('s_mul_i32', S(87), sT, 20480)); e(v('v_add_u32', vQA[0], S(87), vL16))
    e(s('s_sub_u32', S(87), 20480, S(87))); e(v('v_add_u32', vQA[1], S(87), vL16))
    e(s('s_xor_b32', S(87), sW, sPAR)); e(s('s_mul_i32', sPKQ, S(87), 20480)); e(v('v_add_u32', vQW, sPKQ, vL16))
    e(v('v_add_u32', vPW, sLDW, vL16))
    for it in range(4):
        e(s('s_xor_b32', sCOL[it], sT, it)); e(s('s_xor_b32', sCOL[it], sCOL[it], sPAR)); e(s('s_lshl_b32', sCOL[it], sCOL[it], 7))
    e(v('v_mul_u32_u24', vSTR, 48, q)); e(v('v_add_u32', vSTR, MSTAT, vSTR))
    e(v('v_and_b32', t1, 1, g)); e(v('v_lshlrev_b32', t1, 3, t1)); e(v('v_lshrrev_b32', t2, 1, g))
    e(v('v_lshl_add_u32', t1, t2, 2, t1)); e(v('v_add_u32', vSTW, t1, vSTR))
    E.out("s_waitcnt lgkmcnt(0)")
    e(s('s_cmp_eq_u32', sblk, 0))
    for i in range(10): e(s('s_cselect_b32', S(88+i), S(60+i), S(70+i)))
    px, pk, pv, pwq, pwo = S(88, 2), S(90, 2), S(92, 2), S(94, 2), S(96, 2)
    def srd(d, p, offreg, size):
        e(s('s_add_u32', d[0], p[0], offreg)); e(s('s_addc_u32', d[1], p[1], 0)); e(s('s_and_b32', d[1], d[1], 0xffff))
        e(s('s_mov_b32', d[2], size)); e(s('s_mov_b32', d[3], 0x20000))
    e(s('s_mul_i32', S(87), sb, 143360)); srd(sX, px, S(87), 143360)
    e(s('s_lshl_b32', S(87), shp, 10)); srd(sWQ, pwq, S(87), 3670016 - 7*1024)
    e(s('s_lshl_b32', S(87), sb, 3)); e(s('s_add_u32', S(87), S(87), shp)); e(s('s_lshl_b32', S(87), S(87), 19))
    srd(sK, pk, S(87), 524288); srd(sVV, pv, S(87), 524288)
    e(s('s_mul_i32', S(87), shp, 458752)); srd(sWO, pwo, S(87), 458752)
    e(s('s_mov_b32', S(87), 0)); srd(sWS, S(80, 2), S(87), WS_BYTES)
    e(s('s_lshl_b32', S(87), sblk, 4)); e(s('s_add_u32', S(87), S(87), sb)); e(s('s_lshl_b32', S(87), S(87), 3)); e(s('s_add_u32', S(87), S(87), shp))
    e(s('s_mul_i32', sPART, S(87), PART_SZ)); e(s('s_mul_i32', sT2, sW, 35*1024)); e(s('s_add_u32', sPART, sPART, sT2))
    e(s('s_mul_i32', sPARK, S(2), PARK_SZ)); e(s('s_add_u32', sPARK, sPARK, PARK0))
    e(s('s_add_u32', sPKQ, sPKQ, sPARK))
    e(s('s_add_u32', sPKW, sPARK, sLDW))
    if OPT['stamp']:
        e(s('s_lshl_b32', sSTAMP, S(2), 2)); e(s('s_add_u32', sSTAMP, sSTAMP, sW)); e(s('s_lshl_b32', sSTAMP, sSTAMP, 8))
        e(s('s_add_u32', sSTAMP, sSTAMP, STAMP0))

def init_mstat():
    L = [v('v_mov_b32', vTMP[15], 0xff800000)]
    for k in range(3): L.append(ds_w32(vSTW, vTMP[15], 16*k))
    return L

RG8 = [1, 2, 5, 6, 9, 10, 13, 14]
RG4 = [1, 5, 9, 13]
DG = [21, 22, 25, 29, 33]

def phase_q(E):
    e = E.emit
    for grp in x_dma(0): e(grp)
    for gi in range(4): e(dma_group('Wq', gi, gi))
    for p in range(1, 4):
        for grp in x_dma(p): e(grp)
    e(init_mstat())
    stamp(E)
    def tile(t8, j):
        head, u, ee = t8 >> 2, (t8 >> 1) & 1, t8 & 1
        return acc_tile(((head*2+u)*10 + j)*2 + ee)
    def rdB(n):
        ks, j = divmod(n, 10)
        p, u = ks >> 1, ks & 1
        slot = p & 3
        return ds_r128(aB[n & 3], vXA[2*(slot >> 1) + u], (slot & 1)*20480 + 2048*j)
    M = []; fix = {}
    NK = 14
    pre = rd_wq(0, aBIG[0]) + rd_wq(1, aBIG[0])
    pre += dma_group('Wq', 4, 0, need_lds=('rWq', 0)) + dma_group('Wq', 5, 1, need_lds=('rWq', 1))
    pre += [waitvm(('x', 0)), barrier()] + [rdB(n) for n in range(LA)]
    fix[-1] = pre
    for ks in range(NK):
        for j in range(10):
            n = ks*10 + j
            for t8 in range(8):
                d = tile(t8, j)
                M.append(mfma(d, aBIG[ks & 1][t8], aB[n & 3], d if ks else 0))
            if n + LA < NK*10:
                g = n*8
                nn = n + LA
                if nn % 20 == 0:
                    p = nn // 20
                    place(fix, g, [waitvm(('x', p)), waitlds(), barrier()])
                    if p + 3 <= 6:
                        for k, grp in enumerate(x_dma(p+3)): place(fix, g + 27 + 4*k, grp[:2]); place(fix, g + 28 + 4*k, grp[2])
                place(fix, g, rdB(nn))
        if ks + 1 < NK:
            for hh in range(2):
                gi = (ks+1)*2 + hh
                nx = gi + 4
                dm = dma_group('Wq', nx, nx & 3, ('rWq', gi)) if nx < 28 else dma_group('K', nx-28, nx & 3, ('rWq', gi))
                window(fix, ks*80 + hh*40, 40, rd_wq(gi, aBIG[(ks+1) & 1]), dm, RG8, DG)
    run_phase(E, M, fix)
    stamp(E)
    e(waitlds()); e(barrier())
    tm = [vTMP.sub(0, 8), vTMP.sub(8, 8)]
    k = 0
    for head in range(2):
        for u in range(2):
            for j in range(10):
                pre, r8 = get8([tile(head*4+2*u, j), tile(head*4+2*u+1, j)], tm[k & 1]); k += 1
                e(pre); e(pack8(r8))
                o = u*10240 + j*1024
                if head == 0: e(ds_w128(vQW, r8.sub(0, 4), o))
                else:
                    e(s('s_add_u32', sT2, sPKQ, o & ~4095))
                    e(bstore4(r8.sub(0, 4), vL16, sWS, sT2, o & 4095, OPT['parkst'], tag='Q1st'))
    e(waitlds())

def s_tile(hf, tt, j):
    c = 2*hf + (tt >> 1)
    return acc_tile((c*10 + j)*2 + (tt & 1))

def max_items(hf, j, first):
    L = []
    for cq in range(2):
        tl = [s_tile(hf, 2*cq, j), s_tile(hf, 2*cq+1, j)]
        pre, r8 = get8(tl, vTMP.sub(8*(cq & 1), 8))
        L += pre
        for i in range(0, 8, 2):
            if first and cq == 0 and i == 0: L.append(v('v_max_f32', vMX[j], r8[0], r8[1]))
            else: L.append(v('v_max3_f32', vMX[j], vMX[j], r8[i], r8[i+1]))
    return L

def xlane(regs, op):
    L = []
    for k in range(5): L.append(v('v_permlane32_swap_b32', regs[2*k], regs[2*k+1]))
    for k in range(5): L.append(v(op, regs[2*k], regs[2*k], regs[2*k+1]))
    for k in range(3): L.append(v('v_permlane16_swap_b32', regs[4*k], regs[4*k+2]))
    for k in range(3): L.append(v(op, regs[4*k], regs[4*k], regs[4*k+2]))
    return L

def exp_items(c, j):
    tl = [acc_tile((c*10+j)*2), acc_tile((c*10+j)*2+1)]
    pre, r8 = get8(tl, V(ACCV0 + 80 + 8*j, 8))
    L = list(pre)
    for i in range(8): L.append(v('v_fma_f32', r8[i], r8[i], sC, vMX[j]))
    for i in range(8): L.append(v('v_exp_f32', r8[i], r8[i]))
    for i in range(8):
        if c == 0 and i == 0: L.append(v('v_add_f32', vSUM[j], r8[0], r8[1]))
        elif c == 0 and i == 1: pass
        else: L.append(v('v_add_f32', vSUM[j], vSUM[j], r8[i]))
    L += pack8(r8)
    L.append(ds_w128(vPW, r8.sub(0, 4), (c & 1)*HALF + j*1024))
    return L

def head_body(E):
    e = E.emit
    stamp(E)
    def rdQ(n):
        ksn, j = divmod(n, 10); it, u = (ksn >> 1) & 3, ksn & 1
        return ds_r128(aB[n & 3], vQA[it & 1], (it >> 1)*HALF + u*10240 + j*1024)
    M = []; fix = {}
    pre = rd_k(0, aBIG[0]) + rd_k(1, aBIG[0])
    pre += dma_group('K', 4, 0, ('rK', 0)) + dma_group('K', 5, 1, ('rK', 1))
    pre += [barrier()] + [rdQ(n) for n in range(LA)]
    fix[-1] = pre
    for un in range(8):
        hf, it = un >> 2, un & 3
        for u in range(2):
            for j in range(10):
                n = (un*2 + u)*10 + j
                for tt in range(4):
                    d = s_tile(hf, tt, j)
                    M.append(mfma(d, aBIG[un & 1][u*4+tt], aB[n & 3], d if (it or u) else 0))
                if n + LA < 160:
                    if n + LA == 40: place(fix, n*4, [waitvm('Q1b'), barrier()])
                    place(fix, n*4, rdQ(n+LA))
        if un + 1 < 8:
            for pr in range(2):
                gi = (un+1)*2 + pr
                nx = gi + 4
                dm = dma_group('K', nx, nx & 3, ('rK', gi)) if nx < 16 else dma_group('V', nx-16, nx & 3, ('rK', gi))
                window(fix, un*80 + pr*40, 40, rd_k(gi, aBIG[(un+1) & 1]), dm, RG4, DG)
    window(fix, 7*80 + 40, 40, rd_v(0, aPV[0]), dma_group('V', 4, 0, ('rV', 0)), RG8, DG)
    bg = []
    items = []
    for j in range(10): items += max_items(0, j, True)
    bg.append((324, 590, items))
    run_phase(E, M, fix, bg)
    stamp(E)
    for j in range(10): e(max_items(1, j, False))
    e(xlane(vMX, 'v_max_f32'))
    for k in range(3): e(ds_maxf(vSTW, vMX[4*k], 16*k))
    e(s('s_cmp_eq_u32', sHEAD, 0))
    E.out("s_cbranch_scc0 L_nx_wo")
    for i in range(4): e(s('s_add_u32', sCOL[i], sCOL[i], 262144))
    for gi in range(4): e(s('s_add_u32', sNX[gi], sCOL[gi >> 1], 128*(gi & 1)*512))
    E.out("s_branch L_nx_done")
    E.label("L_nx_wo")
    for i in range(3): e(s('s_mov_b32', sK[i], sWO[i]))
    for gi in range(4): e(s('s_mov_b32', sNX[gi], wo_soff(gi)))
    t0, t1 = vTMP[0], vTMP[1]
    e(v('v_lshrrev_b32', t0, 4, V(0))); e(v('v_lshlrev_b32', t1, 5, t0)); e(v('v_and_b32', vKO[0], 0xf0, vL16))
    e(v('v_xor_b32', t1, t1, vKO[0])); e(v('v_xor_b32', vKO[1], 128, t1))
    e(v('v_mul_u32_u24', t0, 896, t0))
    e(s('s_mul_i32', sT, sW, 224)); e(s('s_and_b32', sT, sT, 0xffffffc0))
    e(v('v_add_u32', t0, sT, t0))
    e(v('v_add_u32', vKO[0], t0, t1)); e(v('v_add_u32', vKO[1], t0, vKO[1]))
    e(v('v_add_u32', vKO[2], 2*2560, vKO[0])); e(v('v_add_u32', vKO[3], 3*2560, vKO[1])); e(v('v_add_u32', vKO[1], 2560, vKO[1]))
    E.label("L_nx_done")
    E.settle()
    e(waitlds()); e(barrier())
    for k in range(3): e(ds_r128(vMX.sub(4*k, 4), vSTR, 16*k))
    for j in range(10): e(v('v_mul_f32', vMX[j], sC, vMX[j]));
    for j in range(10): e(v('v_sub_f32', vMX[j], 0, vMX[j]))
    for j in range(10): e(exp_items(0, j))
    stamp(E)
    def rdP(n):
        ks, j = divmod(n, 10); c, w2 = ks >> 2, ks & 3
        return ds_r128(aB[n & 3], vL16b if (c & 1) else vL16, (w2*10 + j)*1024)
    M = []; fix = {}; bg = []
    fix[-1] = [waitlds(), barrier()] + [rdP(n) for n in range(LA)]
    for ks in range(16):
        for j in range(10):
            n = ks*10 + j
            for t in range(4):
                d = o_tile(t, j)
                M.append(mfma(d, aPV[ks & 1][t], aB[n & 3], d if ks else 0))
            if n + LA < 160:
                if (n + LA) % 40 == 0: place(fix, n*4, [waitlds(), barrier()])
                place(fix, n*4, rdP(n+LA))
        if ks + 1 < 16:
            gi = ks + 1; nx = gi + 4
            dm = dma_group('V', nx, nx & 3, ('rV', gi)) if nx < 16 else dma_group('nx', nx-16, nx & 3, ('rV', gi))
            window(fix, ks*40, 40, rd_v(gi, aPV[(ks+1) & 1]), dm, RG8, DG)
    lastg = lambda c: (c+1)*160 - 4*LA - 2
    for c in range(3):
        items = []
        for j in range(10): items += exp_items(c+1, j)
        if c == 0: items += init_mstat()
        if c == 2:
            items += xlane(vSUM, 'v_add_f32')
            items += link([s('s_mul_i32', sT2, sW, 768), v('v_add_u32', vTMP[0], sT2, vSTW)])
            for k in range(3): items.append(ds_w32(vTMP[0], vSUM[4*k], SSTAT - MSTAT + 16*k))
        g0 = c*160 if c == 0 else c*160 - 4*LA + 1
        bg.append((g0, lastg(c), items))
    items = []
    tb = V(ACCV0 + 80, 48)
    for w2 in range(4):
        for k in range(3): items.append(ds_r128(tb.sub(12*w2 + 4*k, 4), vSTR, SSTAT - MSTAT + 768*w2 + 16*k))
    for j in range(10):
        items.append(v('v_add_f32', tb[j], tb[j], tb[12+j])); items.append(v('v_add_f32', tb[24+j], tb[24+j], tb[36+j]))
        items.append(v('v_add_f32', tb[j], tb[j], tb[24+j])); items.append(v('v_rcp_f32', vMX[j], tb[j]))
    bg.append((490, 600, items))
    for k, grp in enumerate(reload_dma(sPKW, 0, 0, 'Q1a')):
        g = 3*160 + 2 + 40*k + 35 - 2
        place(fix, g, grp[:2])
        for i, d in enumerate(grp[2:]): place(fix, g + 1 + i, d)
    run_phase(E, M, fix, bg)
    stamp(E)

def o_convert(E, sink):
    e = E.emit
    tm = [vTMP.sub(0, 8), vTMP.sub(8, 8)]
    k = 0
    for u in range(2):
        for j in range(10):
            pre, r8 = get8([o_tile(2*u, j), o_tile(2*u+1, j)], tm[k & 1]); k += 1
            e(pre)
            for i in range(8): e(v('v_mul_f32', r8[i], r8[i], vMX[j]))
            e(pack8(r8))
            e(sink(u, j, r8.sub(0, 4)))

def tail0(E):
    e = E.emit
    e(waitlds()); e(barrier())
    for grp in reload_dma(sPKW, HALF, 1, 'Q1b'): e(grp)
    def sink(u, j, r):
        o = 81920 + u*HALF + j*1024
        return [s('s_add_u32', sT2, sPKW, o & ~4095), bstore4(r, vL16, sWS, sT2, o & 4095, OPT['parkst'], tag='O0st')]
    o_convert(E, sink)
    e(s('s_mov_b32', sHEAD, 1)); e(s('s_add_u32', sVH, sVH, 262144))
    e(waitvm('Q1a'))
    E.settle()

def phase_o(E):
    e = E.emit
    e(waitvm('Q1a')); e(waitlds()); e(barrier())
    o_convert(E, lambda u, j, r: ds_w128(vPW, r, u*HALF + j*1024))
    ln = V(0); t0, t1, t2, t3 = vTMP[0], vTMP[1], vTMP[2], vTMP[3]
    e(v('v_lshrrev_b32', t0, 4, ln))
    e(v('v_bfe_u32', t1, ln, 2, 2))
    e(v('v_and_b32', t2, 1, t0)); e(v('v_lshl_add_u32', t2, t2, 2, t1))
    e(v('v_lshlrev_b32', t0, 10, t0)); e(v('v_lshl_add_u32', t0, t1, 8, t0))
    e(v('v_and_b32', t1, 3, ln)); e(v('v_lshl_add_u32', t0, t1, 3, t0)); e(v('v_add_u32', t0, sRING, t0))
    e(s('s_and_b32', sT, sW, 1))
    for t in range(7):
        e(s('s_add_u32', sT2, sT, t)); e(v('v_xor_b32', t3, sT2, t2)); e(v('v_lshl_add_u32', vWOA[t], t3, 5, t0))
    stamp(E)
    def rdO(n):
        ks, j = divmod(n, 10); c, w2 = ks >> 2, ks & 3
        return ds_r128(aB[n & 3], vL16b if (c & 1) else vL16, (w2*10 + j)*1024)
    M = []; fix = {}
    pre = rd_wo(0, aBIG[0]) + rd_wo(1, aBIG[0])
    pre += dma_group('Wo', 4, 0, ('rWo', 0)) + dma_group('Wo', 5, 1, ('rWo', 1))
    pre += [waitlds(), barrier()] + [rdO(n) for n in range(LA)]
    fix[-1] = pre
    RG7 = [1, 2, 4, 5, 8, 9, 11]
    DG7 = [17, 18, 20, 23, 26]
    for ks in range(16):
        for j in range(10):
            n = ks*10 + j
            for t in range(7):
                d = acc_tile(t*10 + j)
                M.append(mfma(d, aBIG[ks & 1][t], aB[n & 3], d if ks else 0))
            if n + LA < 160:
                nn = n + LA
                if nn % 40 == 0:
                    c = nn // 40
                    w = [waitvm(('O0', c-2))] if c >= 2 else []
                    place(fix, n*7, w + [waitlds(), barrier()])
                    if c in (1, 2):
                        for k, grp in enumerate(reload_dma(sPKW, 81920 + (c-1)*HALF, (c-1) & 1, ('O0', c-1))):
                            g = n*7 + 3*7 + 29 + 35*k
                            place(fix, g, grp[:2])
                            for i, d2 in enumerate(grp[2:]): place(fix, g + 1 + i, d2)
                place(fix, n*7, rdO(nn))
        if ks + 1 < 16:
            for hh in range(2):
                gi = (ks+1)*2 + hh; nx = gi + 4
                dm = dma_group('Wo', nx, nx & 3, ('rWo', gi)) if nx < 32 else None
                window(fix, ks*70 + hh*35, 35, rd_wo(gi, aBIG[(ks+1) & 1]), dm, RG7, DG7)
    run_phase(E, M, fix)
    stamp(E)
    tm = [vTMP.sub(0, 8), vTMP.sub(8, 8)]
    k = 0
    for t in range(7):
        for jp in range(5):
            pre, r8 = get8([acc_tile(t*10 + 2*jp), acc_tile(t*10 + 2*jp + 1)], tm[k & 1]); k += 1
            e(pre); e(pack8(r8))
            o = (t*5 + jp)*1024
            e(s('s_add_u32', sT2, sPART, o & ~4095))
            e(bstore4(r8.sub(0, 4), vL16, sWS, sT2, o & 4095, OPT['partst'], tag='part'))
    if OPT['stamp']:
        e(waitvm('ALL'))
        stamp(E)
        for i in range(stamp_n[0]):
            e(v('v_mov_b32', vTMP[0], S(60+2*i)))
            e(v('v_mov_b32', vTMP[1], 0))
            e(bstore(1, vTMP[0], vTMP[1], sWS, sSTAMP, 4*i))
    E.out("s_endpgm")

def rename(vm, a, b):
    return [dict(x, tag=(b, x['tag'][1])) if isinstance(x['tag'], tuple) and x['tag'][0] == a else dict(x) for x in vm]

def gen_main():
    import copy
    E = Emitter()
    prologue(E)
    phase_q(E)
    E.settle()
    entryA = copy.deepcopy(E.vm)
    sn0 = stamp_n[0]
    D = Emitter(); D.vm = copy.deepcopy(entryA); D.sites = []
    head_body(D); sitesA = D.sites; endA = copy.deepcopy(D.vm); D.sites = None
    tail0(D); entryB = rename(D.vm, 'nx', 'K')
    stamp_n[0] = sn0
    D = Emitter(); D.vm = copy.deepcopy(entryB); D.sites = []
    head_body(D); sitesB = D.sites; endB = copy.deepcopy(D.vm)
    assert [x['tag'] for x in endA] == [x['tag'] for x in endB]
    forced = [min([x for x in (a, b) if x is not None], default=None) for a, b in zip(sitesA, sitesB)]
    stamp_n[0] = sn0
    E.label("L_head")
    E.forced = forced; E.site_i = 0
    head_body(E)
    E.forced = None
    endvm = copy.deepcopy(endA); endlg = copy.deepcopy(E.lg); endhist = list(E.hist); endpos = E.pos
    E.vm = copy.deepcopy(endvm)
    E.emit(s('s_cmp_eq_u32', sHEAD, 0))
    E.out("s_cbranch_scc0 L_ophase")
    tail0(E)
    E.out("s_branch L_head")
    E.label("L_ophase")
    E.vm = rename(endvm, 'nx', 'Wo'); E.lg = endlg
    E.settle()
    phase_o(E)
    return E

def gen_reduce():
    E = Emitter(); e = E.emit
    E.out("s_cmp_ge_u32 s2, 1120"); E.out("s_cbranch_scc0 L_red_go"); E.out("s_endpgm"); E.label("L_red_go")
    E.out("s_load_dwordx2 s[4:5], s[0:1], 80")
    E.out("s_load_dwordx2 s[6:7], s[0:1], 96")
    e(v('v_lshrrev_b32', V(2), 6, V(0))); e(v('v_and_b32', V(0), 63, V(0))); e(v('v_readfirstlane_b32', S(3), V(2)))
    e(v('v_lshlrev_b32', V(1), 4, V(0)))
    e(s('s_mov_b32', S(16), (2**32 + 34)//35)); E.out("s_mul_hi_u32 s17, s2, s16")
    e(s('s_mul_i32', S(18), S(17), 35)); e(s('s_sub_u32', S(18), S(2), S(18)))
    e(s('s_mul_i32', S(19), S(17), 8*PART_SZ)); e(s('s_mul_i32', S(20), S(3), 35)); e(s('s_add_u32', S(20), S(20), S(18)))
    e(s('s_lshl_b32', S(20), S(20), 10)); e(s('s_add_u32', S(19), S(19), S(20)))
    e(s('s_mul_i32', S(21), S(18), 52)); e(s('s_lshr_b32', S(21), S(21), 8)); e(s('s_mul_i32', S(22), S(21), 5)); e(s('s_sub_u32', S(22), S(18), S(22)))
    e(s('s_and_b32', S(23), S(17), 15)); e(s('s_lshr_b32', S(24), S(17), 4))
    e(s('s_mul_i32', S(23), S(23), 160)); e(s('s_lshl_b32', S(22), S(22), 5)); e(s('s_add_u32', S(23), S(23), S(22)))
    e(s('s_mul_i32', S(23), S(23), 1792)); e(s('s_mul_i32', S(24), S(24), 896)); e(s('s_add_u32', S(23), S(23), S(24)))
    e(s('s_mul_i32', S(24), S(3), 224)); e(s('s_add_u32', S(23), S(23), S(24))); e(s('s_lshl_b32', S(21), S(21), 5)); e(s('s_add_u32', S(23), S(23), S(21)))
    e(v('v_and_b32', V(2), 15, V(0))); e(v('v_mul_u32_u24', V(2), 1792, V(2)))
    e(v('v_lshrrev_b32', V(3), 4, V(0))); e(v('v_lshl_add_u32', V(2), V(3), 3, V(2)))
    E.out("s_waitcnt lgkmcnt(0)")
    e(s('s_mov_b32', S(8), S(4))); e(s('s_and_b32', S(9), S(5), 0xffff)); e(s('s_mov_b32', S(10), 4587520)); e(s('s_mov_b32', S(11), 0x20000))
    e(s('s_mov_b32', S(12), S(6))); e(s('s_and_b32', S(13), S(7), 0xffff)); e(s('s_mov_b32', S(14), PARK0)); e(s('s_mov_b32', S(15), 0x20000))
    for h in range(8):
        e(bload(4, V(8+4*h, 4), V(1), S(12, 4), S(19), 0, OPT['redld']))
        if h < 7: e(s('s_add_u32', S(19), S(19), PART_SZ))
    acc = V(40, 8)
    for h in range(8):
        for i in range(4):
            src = V(8+4*h+i)
            if h == 0:
                e(v('v_lshlrev_b32', acc[2*i], 16, src)); e(v('v_and_b32', acc[2*i+1], 0xffff0000, src))
            else:
                e(v('v_lshlrev_b32', V(4), 16, src)); e(v('v_and_b32', V(5), 0xffff0000, src))
                e(v('v_add_f32', acc[2*i], acc[2*i], V(4))); e(v('v_add_f32', acc[2*i+1], acc[2*i+1], V(5)))
    e(pack8(acc))
    e(bstore(2, acc.sub(0, 2), V(2), S(8, 4), S(23), 0))
    e(s('s_add_u32', S(23), S(23), 16*1792))
    e(bstore(2, acc.sub(2, 2), V(2), S(8, 4), S(23), 0))
    E.out("s_endpgm")
    return E

def kd(name, vgpr, accoff, sgpr):
    return f""".amdhsa_kernel {name}
  .amdhsa_next_free_vgpr {vgpr}
  .amdhsa_next_free_sgpr {sgpr}
  .amdhsa_accum_offset {accoff}
  .amdhsa_group_segment_fixed_size 0
  .amdhsa_kernarg_size 104
  .amdhsa_user_sgpr_count 2
  .amdhsa_user_sgpr_kernarg_segment_ptr 1
  .amdhsa_system_sgpr_workgroup_id_x 1
.end_amdhsa_kernel
"""

def main():
    ref = open(f"cdna_kernels/{NAME}.s.ref").read().splitlines()
    hdr = [l for l in ref[:14] if l.startswith(";") and "@launch" not in l]
    Em = gen_main(); Er = gen_reduce()
    out = hdr + [
        "; Generated by a hand-written python generator (fused Q-proj + attention + out-proj partials, then a reduce).",
        f"; @launch kernel=mha_main_kernel grid=(256,1,1) block=(256,1,1) lds={LDS_BYTES}",
        "; @launch kernel=mha_reduce_kernel grid=(1120,1,1) block=(256,1,1) lds=0",
        '.amdgcn_target "amdgcn-amd-amdhsa--gfx950"', ".text",
        ".globl mha_main_kernel", ".p2align 8", ".type mha_main_kernel,@function", "mha_main_kernel:"]
    out += Em.lines
    out += [".globl mha_reduce_kernel", ".p2align 8", ".type mha_reduce_kernel,@function", "mha_reduce_kernel:"]
    out += Er.lines
    out += ['.section .rodata,"a"', ".p2align 6", kd("mha_main_kernel", 512, 256, 102), ".p2align 6", kd("mha_reduce_kernel", 48, 48, 32)]
    path = OPT.get('out') or f"cdna_kernels/{NAME}.s"
    open(path, "w").write("\n".join(out) + "\n")
    print("wrote", path, "lines", len(out), Em.count, file=sys.stderr)

OPT.setdefault('out', '')
if __name__ == "__main__":
    main()
```

```python
class Reg:
    def __init__(s, k, lo, n=1):
        s.k, s.lo, s.n = k, lo, n
    @property
    def t(s):
        return f"{s.k}{s.lo}" if s.n == 1 else f"{s.k}[{s.lo}:{s.lo+s.n-1}]"
    @property
    def set(s):
        return {f"{s.k}{i}" for i in range(s.lo, s.lo+s.n)}
    def __getitem__(s, i):
        assert 0 <= i < s.n
        return Reg(s.k, s.lo+i, 1)
    def sub(s, i, n):
        assert 0 <= i and i+n <= s.n
        return Reg(s.k, s.lo+i, n)
    def __str__(s): return s.t
def V(lo, n=1): return Reg('v', lo, n)
def A(lo, n=1): return Reg('a', lo, n)
def S(lo, n=1): return Reg('s', lo, n)
def regset(*xs):
    r = set()
    for x in xs:
        if isinstance(x, Reg): r |= x.set
        elif isinstance(x, str) and x in ('m0', 'vcc', 'scc', 'exec'): r.add(x)
    return r
def T(x):
    if isinstance(x, Reg): return x.t
    if isinstance(x, float): return repr(x)
    if isinstance(x, int): return str(x) if -16 <= x <= 64 else hex(x & 0xffffffff)
    return x

class I:
    __slots__ = ('text', 'kind', 'rd', 'wr', 'tag', 'cost', 'crd', 'need_vm', 'need_lds', 'wide', 'prod')
    def __init__(s, text, kind, rd=(), wr=(), tag=None, cost=1, crd=(), need_vm=None, need_lds=None, wide=False):
        s.text, s.kind, s.rd, s.wr, s.tag, s.cost = text, kind, set(rd), set(wr), tag, cost
        s.crd = set(crd); s.need_vm = need_vm; s.need_lds = need_lds; s.wide = wide; s.prod = []

def mfma(D, Aa, Bb, C):
    c = C.t if isinstance(C, Reg) else "0"
    return I(f"v_mfma_f32_16x16x32_bf16 {D}, {Aa}, {Bb}, {c}", 'mfma', rd=regset(Aa, Bb), wr=D.set,
             crd=regset(C), cost=2)
def off(o):
    assert 0 <= o < 65536, o
    return f" offset:{o}" if o else ""
def ds_r128(d, a, o=0, tag=None, need_vm=None):
    return I(f"ds_read_b128 {d}, {a}{off(o)}", 'dsr', rd=a.set, wr=d.set, tag=tag, need_vm=need_vm)
def ds_rtr(d, a, o=0, tag=None, need_vm=None):
    return I(f"ds_read_b64_tr_b16 {d}, {a}{off(o)}", 'dsr', rd=a.set, wr=d.set, tag=tag, need_vm=need_vm)
def ds_w128(a, s, o=0): return I(f"ds_write_b128 {a}, {s}{off(o)}", 'dsw', rd=regset(a, s))
def ds_w32(a, s, o=0): return I(f"ds_write_b32 {a}, {s}{off(o)}", 'dsw', rd=regset(a, s))
def ds_maxf(a, s, o=0): return I(f"ds_max_f32 {a}, {s}{off(o)}", 'dsw', rd=regset(a, s))
def voffs(o):
    assert 0 <= o < 4096, o
    return f" offset:{o}" if o else ""
def dma(voff, srd, soff, imm=0, fl="nt", tag=None, need_lds=None):
    f = f" {fl}" if fl else ""
    return I(f"buffer_load_dwordx4 {voff}, {srd}, {T(soff)} offen{voffs(imm)}{f} lds", 'dma',
             rd=regset(voff, srd, soff, 'm0'), tag=tag, need_lds=need_lds)
def bstore4(src, voff, srd, soff, imm=0, fl="", tag=None):
    f = f" {fl}" if fl else ""
    return I(f"buffer_store_dwordx4 {src}, {voff}, {srd}, {T(soff)} offen{voffs(imm)}{f}", 'vst',
             rd=regset(src, voff, srd, soff), tag=tag, wide=True)
def bstore(n, src, voff, srd, soff, imm=0, fl="", tag=None):
    f = f" {fl}" if fl else ""
    nm = {1: "dword", 2: "dwordx2", 4: "dwordx4"}[n]
    return I(f"buffer_store_{nm} {src}, {voff}, {srd}, {T(soff)} offen{voffs(imm)}{f}", 'vst',
             rd=regset(src, voff, srd, soff), tag=tag, wide=(n == 4))
def bload(n, dst, voff, srd, soff, imm=0, fl="", tag=None):
    f = f" {fl}" if fl else ""
    nm = {1: "dword", 2: "dwordx2", 4: "dwordx4"}[n]
    return I(f"buffer_load_{nm} {dst}, {voff}, {srd}, {T(soff)} offen{voffs(imm)}{f}", 'vld',
             rd=regset(voff, srd, soff), wr=dst.set, tag=tag)
TRANS = ('v_exp_f32', 'v_rcp_f32', 'v_log_f32', 'v_rsq_f32', 'v_sqrt_f32')
def v(op, d, *src, rdw=False):
    kind = 'trans' if op in TRANS else ('perm' if op.startswith('v_permlane') else 'valu')
    rd = regset(*src); wr = regset(d)
    if kind == 'perm': rd |= regset(d); wr |= regset(*src)
    if rdw: rd |= regset(d)
    if op in ('v_readfirstlane_b32',): kind = 'rfl'
    return I(f"{op} {T(d)}, " + ", ".join(T(x) for x in src), kind, rd=rd, wr=wr, cost=2 if kind == 'trans' else 1)
def vpk(op, d, *src, mods=""):
    return I(f"{op} {T(d)}, " + ", ".join(T(x) for x in src) + (" " + mods if mods else ""), 'valu', rd=regset(*src), wr=regset(d))
def s(op, d, *src):
    wr = regset(d) | {'scc'}
    if op.startswith('s_cmp'):
        return I(f"{op} {T(d)}, " + ", ".join(T(x) for x in src), 'salu', rd=regset(d, *src), wr={'scc'})
    if op in ('s_mov_b32', 's_mov_b64', 's_mul_i32', 's_cselect_b32'): wr = regset(d)
    return I(f"{op} {T(d)}, " + ", ".join(T(x) for x in src), 'salu', rd=regset(*src), wr=wr)
def raw(text, kind='salu', rd=(), wr=()): return I(text, kind, rd=rd, wr=wr)
def barrier(): return I("s_barrier", 'barrier')
def waitvm(tag): return I("", 'waitvm', need_vm=tag, cost=1)
def waitlds(tag=None): return I("", 'waitlds', need_lds=tag if tag is not None else 'ALL', cost=1)

VALUK = ('valu', 'trans', 'perm', 'rfl')
class Emitter:
    def __init__(s):
        s.lines = []; s.lg = []; s.vm = []; s.hist = []
        s.lastw = {}; s.pos = 0; s.sites = None; s.forced = None; s.site_i = 0; s.count = {}
    def out(s, text, ws=1):
        s.lines.append(text); s.pos += ws
    def label(s, name):
        s.lines.append(name + ":")
    def comment(s, t): s.lines.append("; " + t)
    def _wait_lg(s, idx):
        n = len(s.lg) - 1 - idx
        assert n <= 15 or True
        s.out(f"s_waitcnt lgkmcnt({min(n, 15)})")
        n = min(n, 15)
        s.lg = s.lg[len(s.lg)-n:] if n else []
    def _wait_vm_n(s, n):
        assert n <= 63
        s.out(f"s_waitcnt vmcnt({n})")
        if n < len(s.vm): s.vm = s.vm[len(s.vm)-n:] if n else []
    def _need_vm(s, tag):
        idx = -1
        for i, e in enumerate(s.vm):
            if tag == 'ALL' or e['tag'] == tag: idx = i
        n = None if idx < 0 else len(s.vm) - 1 - idx
        if s.sites is not None:
            s.sites.append(n)
        if s.forced is not None:
            fn = s.forced[s.site_i]; s.site_i += 1
            assert n is None or (fn is not None and fn <= n), (tag, n, fn)
            n = fn
        if n is not None: s._wait_vm_n(n)
    def emit(s, ins):
        if isinstance(ins, (list, tuple)):
            for x in ins: s.emit(x)
            return
        if ins.need_vm is not None: s._need_vm(ins.need_vm)
        if ins.need_lds is not None:
            idx = -1
            for i, e in enumerate(s.lg):
                if ins.need_lds == 'ALL' or e['tag'] == ins.need_lds: idx = i
            if idx >= 0: s._wait_lg(idx)
        if ins.kind in ('waitvm', 'waitlds'): return
        for p in ins.prod:
            for r in (p.wr & ins.rd):
                assert s.lastw.get(r) is p, ("clobbered", r, ins.text, p.text, s.lastw.get(r).text if s.lastw.get(r) else None)
        for r in ins.wr: s.lastw[r] = ins
        touch = ins.rd | ins.wr | ins.crd
        idx = -1
        for i, e in enumerate(s.lg):
            if e['dst'] & touch: idx = i
        if idx >= 0: s._wait_lg(idx)
        idx = -1
        for i, e in enumerate(s.vm):
            if e['dst'] & touch: idx = i
        if idx >= 0: s._wait_vm_n(len(s.vm) - 1 - idx)
        need = 0
        for (p, ppos) in s.hist:
            d = s.pos - ppos - 1
            r = 0
            k = ins.kind
            if p.kind == 'mfma':
                if k == 'mfma':
                    if p.wr & ins.rd: r = 8
                    if p.wr & ins.crd and p.wr != ins.crd: r = max(r, 6)
                    if p.wr & ins.wr and p.wr != ins.crd: r = max(r, 8)
                elif k in VALUK:
                    if p.wr & (ins.rd | ins.wr): r = 8
                    if p.crd & ins.wr: r = max(r, 3)
                elif k in ('dsr', 'dsw', 'dma', 'vst', 'vld'):
                    if p.wr & (ins.rd | ins.wr): r = 8
            elif p.kind in VALUK:
                if k == 'mfma' and p.wr & (ins.rd | ins.crd): r = 2
                if p.kind == 'trans' and k in ('valu', 'perm', 'rfl') and p.wr & ins.rd: r = max(r, 1)
                if k == 'perm' and p.wr & ins.rd: r = max(r, 2)
                if k == 'rfl' and p.wr & ins.rd: r = max(r, 1)
                sw = {x for x in p.wr if x[0] == 's' or x == 'vcc'}
                if sw:
                    if k in ('dma', 'vst', 'vld') and sw & ins.rd: r = max(r, 5)
                    if k in VALUK and sw & ins.rd: r = max(r, 2)
            elif p.kind == 'salu':
                if 'm0' in p.wr and k == 'dma': r = 1
            elif p.kind == 'vst' and p.wide:
                if p.rd & ins.wr: r = 2
            need = max(need, r - d)
        if need > 0:
            s.out(f"s_nop {need-1}", need)
        s.out(ins.text)
        s.count[ins.kind] = s.count.get(ins.kind, 0) + 1
        s.hist.append((ins, s.pos - 1))
        s.hist = [(p, q) for (p, q) in s.hist if s.pos - q < 12]
        if ins.kind == 'dsr': s.lg.append({'dst': ins.wr, 'tag': ins.tag})
        elif ins.kind == 'dsw': s.lg.append({'dst': set(), 'tag': 'W'})
        elif ins.kind == 'dma' or ins.kind == 'vst': s.vm.append({'dst': set(), 'tag': ins.tag})
        elif ins.kind == 'vld': s.vm.append({'dst': ins.wr, 'tag': ins.tag})
        if len(s.lg) > 15:
            s.lg = s.lg[-15:] if False else s.lg
        assert len(s.vm) <= 63, "too many outstanding vm ops"
    def prewait(s, ins):
        touch = ins.rd | ins.wr | ins.crd
        idx = -1
        for i, e in enumerate(s.lg):
            if e['dst'] & touch: idx = i
            if ins.need_lds is not None and (ins.need_lds == 'ALL' or e['tag'] == ins.need_lds): idx = i
        if idx >= 0: s._wait_lg(idx)
    def settle(s):
        s.out("s_nop 7", 8); s.hist = []

SCLS = ('salu', 'waitvm', 'waitlds', 'barrier')
MEMK = ('dsr', 'dsw', 'dma', 'vst', 'vld')
def vcost(x):
    if x.kind == 'dsw': return 5 if 'b128' in x.text else 2
    if x.kind == 'vst': return 4
    if x.kind == 'trans': return 2
    return 1
def run_phase(E, M, fix, bg=(), cap=2.0):
    n = len(M)
    def gload(g):
        L = fix.get(g, [])
        ns = sum(1 for x in L if x.kind in SCLS or x.need_vm is not None)
        return sum(vcost(x) for x in L if x.kind not in SCLS) + max(0, ns - 1)
    load = [gload(g) for g in range(n)]
    extra = [[] for _ in range(n)]
    for (g0, g1, items) in bg:
        total = sum(vcost(x) for x in items)
        c = cap
        while sum(max(0, c - load[g]) for g in range(g0, g1+1)) < total: c += 0.1
        free = [max(0, c - load[g]) for g in range(g0, g1+1)]
        scale = total / max(sum(free), 1e-9)
        budget = 0.0; k = 0
        for gi, g in enumerate(range(g0, g1+1)):
            budget += free[gi]*scale
            while k < len(items):
                x = items[k]
                if g != g1:
                    if budget < min(vcost(x), 2) - 0.5: break
                    hasv = any(y.kind in VALUK for y in extra[g]) or any(y.kind in VALUK for y in fix.get(g, []))
                    hasm = any(y.kind in MEMK for y in extra[g]) or any(y.kind in MEMK for y in fix.get(g, []))
                    if x.kind in MEMK and (hasv or hasm): break
                    if x.kind == 'trans' and hasm and c <= 2.5: break
                extra[g].append(x); budget -= vcost(x); load[g] += vcost(x); k += 1
        assert k == len(items)
    E.emit(fix.get(-1, []))
    for g in range(n):
        E.emit(M[g])
        L = fix.get(g, [])
        if g + 1 < n: E.prewait(M[g+1])
        for x in L:
            if x.kind in SCLS: E.emit(x)
            elif x.kind in MEMK and not any(y.kind == 'barrier' for y in L): E.prewait(x)
        for x in L:
            if x.kind in MEMK: E.emit(x)
        for x in L:
            if x.kind not in SCLS and x.kind not in MEMK: E.emit(x)
        E.emit(extra[g])

def link(L):
    prods = []
    for x in L:
        x.prod = list(prods)
        if x.kind == 'salu':
            prods = [p for p in prods if not (p.wr - {'scc'}) <= x.wr] + [x]
    for x in L:
        x.prod = [p for p in x.prod if (p.wr - {'scc'}) & x.rd]
    return L
```

```python
import sys, math, copy
sys.path.insert(0, "work")
from asmlib import *

NAME = "concat_heads__mha_block_cached__mha_block_cached__near_ridge"
OPT = dict(out="", stamp=False, kvfl="nt", wfl="nt", xfl="nt", partst="", redld="", dbg=0)
for a in sys.argv[1:]:
    if "=" in a:
        k, val = a.split("=", 1)
        OPT[k] = type(OPT[k])(int(val)) if isinstance(OPT[k], (bool, int)) else val

HALF = 40960
RING0 = 81920
MSTAT = 147456
SSTAT = MSTAT + 1024
LDS_BYTES = SSTAT + 4*768
PART_SZ = 143360
PARK0 = 256*PART_SZ
STAMP0 = PARK0 + 256*163840
WS_BYTES = 287703040

sX, sWQ, sK, sVV, sWO, sWS = S(4, 4), S(8, 4), S(12, 4), S(16, 4), S(20, 4), S(24, 4)
sC2 = S(28, 2); sC = S(28)
sW, sRING, sHEAD, sT, sT2 = S(32), S(33), S(34), S(35), S(36)
sWQH = S(37)
sCOL = [S(40+i) for i in range(4)]
sNX = [S(44+i) for i in range(4)]
sVH, sPART, sPAR, sWL, sQW, sLDW = S(48), S(51), S(52), S(53), S(55), S(56)
sST = [None, S(57), S(58), S(59)]
sSTAMP = S(50)
vLN = V(0)
vL16, vL16b = V(1), V(2)
vKA = [V(3), V(4)]; vQA = [V(5), V(6)]; vPW = V(7)
vVA = [V(8+i) for i in range(4)]
vSO = [V(12+i) for i in range(4)]
vBK, vBV, vBN = V(16), V(17), [V(18), V(19)]
vSTW, vSTR = V(20), V(21)
vXO, vWQA0 = V(22), V(23)
vMX = V(24, 12)
vSUM = V(36, 12)
vXA = [V(36+i) for i in range(4)]; vWQA = [vWQA0, V(40)]; vQW = V(41)
vWOA = [V(24+i) for i in range(7)]
vT = [V(42+i) for i in range(6)]
ACCV0, NACCV = 48, 52
def acc_tile(idx):
    return V(ACCV0+4*idx, 4) if idx < NACCV else A(4*(idx-NACCV), 4)
def pair_tile(u, j, e): return acc_tile((u*10 + j)*2 + e)
aPARK = [[A(112 + 40*u + 4*j, 4) for j in range(10)] for u in range(2)]
aPOOL = [A(192+4*i, 4) for i in range(12)]
aB = [A(240+4*i, 4) for i in range(4)]
LA = 3
def alloc_s():
    F = [dict() for _ in range(8)]
    free = list(aPOOL)
    for k, (u, tt) in enumerate([(u, tt) for u in range(2) for tt in range(4)]): F[0][(u, tt)] = free.pop(0)
    for un in range(8):
        if un + 1 < 8:
            for (u, tt) in [(0, 0), (0, 1), (1, 0), (1, 1)]: F[un+1][(u, tt)] = free.pop(0)
        last_free0 = list(free)
        free += [F[un][(0, tt)] for tt in range(4)]
        if un + 1 < 8:
            for (u, tt) in [(0, 2), (0, 3), (1, 2), (1, 3)]: F[un+1][(u, tt)] = free.pop(0)
        free += [F[un][(1, tt)] for tt in range(4)]
    return F, last_free0, free
FS, _pv0, _all = alloc_s()
aPV = [_pv0[:4], [x for x in _all if all(x.lo != y.lo for y in _pv0[:4])][:4]]
aQ = [aPOOL[0:4], aPOOL[4:8]]
aO = [[A(192+4*i, 4) for i in range(7)], [A(72+4*i, 4) for i in range(7)]]

def stamp(E):
    if not OPT['stamp']: return
    E.emit(waitlds())
    E.out("s_memtime s[60:61]")
    E.out("s_memrealtime s[62:63]")
    E.out("s_waitcnt lgkmcnt(0)")
    E.emit(v('v_mov_b32', V(46), S(60))); E.emit(v('v_mov_b32', V(47), S(62))); E.emit(v('v_mov_b32', V(35), 0))
    E.emit(bstore(2, V(46, 2), V(35), sWS, sSTAMP, 0, tag='stamp'))
    E.emit(s('s_add_u32', sSTAMP, sSTAMP, 8))
    E.out("s_nop 1", 2)

def slot_of(kind, gi): return (gi + 2) & 3 if kind == 'Wq' else gi & 3
def dma_group(kind, gi, need_lds=None):
    L = [s('s_add_u32', 'm0', sRING, slot_of(kind, gi)*4096)]
    L[0].wr.add('m0')
    if kind == 'Wq':
        L.append(s('s_add_u32', sT, sWQH, gi*32*8192)); so, srd, fl = sT, sWQ, OPT['wfl']
    elif kind == 'K':
        hf, it, pr = gi >> 3, (gi >> 1) & 3, gi & 1
        L.append(s('s_add_u32', sT, sCOL[it], (256*hf + 128*pr)*512)); so, srd, fl = sT, sK, OPT['kvfl']
    elif kind == 'V':
        L.append(s('s_add_u32', sT, sVH, gi*16384)); so, srd, fl = sT, sVV, OPT['kvfl']
    elif kind == 'nx':
        so, srd, fl = sNX[gi], sWQ, OPT['wfl']
    elif kind == 'Wo':
        L.append(s('s_mov_b32', sT, wo_soff(gi))); so, srd, fl = sT, sWQ, OPT['wfl']
    for k in range(4):
        L.append(dma(vSO[k], srd, so, k*1024, fl, tag=(kind, gi), need_lds=need_lds if k == 0 else None))
    return link(L)
def wo_soff(gi):
    ks, hh = gi >> 1, gi & 1
    ch, w2 = ks >> 2, ks & 3
    head, u = 1 - (ch >> 1), ch & 1
    return (head*256 + 64*w2 + 32*u + 16*hh)*896
def so_switch(kind):
    if kind == 'K':
        return [v('v_mov_b32', vSO[0], vBK), v('v_xor_b32', vSO[3], 64, vBK), v('v_add_u32', vSO[1], 3072, vSO[3]),
                v('v_add_u32', vSO[2], 6144, vBK), v('v_add_u32', vSO[3], 9216, vSO[3])]
    if kind == 'V':
        return [v('v_mov_b32', vSO[0], vBV)] + [v('v_add_u32', vSO[k], 3072*k, vBV) for k in (1, 2, 3)]
    return [v('v_mov_b32', vSO[0], vBN[0])] + [v('v_add_u32', vSO[k], sST[k], vBN[k & 1]) for k in (1, 2, 3)]

def place(fix, g, items):
    fix.setdefault(g, []).extend(items if isinstance(items, list) else [items])
def window(fix, g0, reads, dmas, rgaps, dgaps, switch=None):
    for r, g in zip(reads, rgaps): place(fix, g0+g, r)
    if switch:
        for i, x in enumerate(so_switch(switch)): place(fix, g0 + dgaps[0] - 6 + i, x)
    if dmas:
        ns = len(dmas) - 4
        place(fix, g0+dgaps[0], dmas[:ns])
        for d, g in zip(dmas[ns:], dgaps[1:]): place(fix, g0+g, d)

def rd_wq(gi, buf):
    slot = slot_of('Wq', gi); L = []
    for u in range(2):
        for e in range(2):
            for h2 in range(2):
                L.append(ds_rtr(buf[2*u+e].sub(2*h2, 2), vWQA[u], slot*4096 + 8*e + 512*h2, tag=('rWq', gi),
                                need_vm=('Wq', gi) if not L else None))
    return L
def rd_k(gi):
    un, pr, slot = gi >> 1, gi & 1, gi & 3
    L = []
    for u in range(2):
        for t2 in range(2):
            L.append(ds_r128(FS[un][(u, 2*pr+t2)], vKA[u], slot*4096 + t2*2048, tag=('rK', gi),
                             need_vm=('K', gi) if not L else None))
    return L
def rd_v(gi, buf):
    slot = gi & 3; L = []
    for t in range(4):
        for h2 in range(2):
            L.append(ds_rtr(buf[t].sub(2*h2, 2), vVA[t], slot*4096 + 2048*h2, tag=('rV', gi),
                            need_vm=('V', gi) if not L else None))
    return L
def rd_wo(gi, buf):
    hh, slot = gi & 1, gi & 3; L = []
    for t in range(7):
        L.append(ds_rtr(buf[t].sub(2*hh, 2), vWOA[t], slot*4096, tag=('rWo', gi),
                        need_vm=('Wo', gi) if not L else None))
    return L
def x_dma(p):
    L = []
    for k in range(5):
        a = s('s_add_u32', 'm0', sWL, (p & 3)*20480 + k*4096); a.wr.add('m0')
        L.append(link([a, s('s_mov_b32', sT2, p*128 + k*28672), dma(vXO, sX, sT2, 0, OPT['xfl'], tag=('x', p))]))
    return L
def cvt(d, a, b): return v('v_cvt_pk_bf16_f32', d, a, b)
def pack8(r8): return [cvt(r8[i], r8[2*i], r8[2*i+1]) for i in range(4)]
def bsel(j, last):
    pr = vMX.sub(j & ~1, 2)
    n = last + 1
    if j & 1: return pr, "op_sel:[" + ",".join(["0"]*last + ["1"]) + "] op_sel_hi:[" + ",".join(["1"]*n) + "]"
    return pr, "op_sel_hi:[" + ",".join(["1"]*last + ["0"]) + "]"

def q_addr_items():
    return [v('v_subrev_u32', vXA[0], sRING, vKA[0]), v('v_subrev_u32', vXA[1], sRING, vKA[1]),
            v('v_add_u32', vXA[2], HALF, vXA[0]), v('v_add_u32', vXA[3], HALF, vXA[1]),
            v('v_xor_b32', vWQA[1], 64, vWQA0), v('v_add_u32', vQW, sQW, vL16)]

def prologue(E):
    e = E.emit
    E.out("s_cmp_ge_u32 s2, 256"); E.out("s_cbranch_scc0 L_main_go"); E.out("s_endpgm"); E.label("L_main_go")
    E.out("s_load_dwordx16 s[60:75], s[0:1], 0")
    E.out("s_load_dwordx4 s[76:79], s[0:1], 64")
    E.out("s_load_dwordx2 s[80:81], s[0:1], 96")
    e(v('v_lshrrev_b32', V(2), 6, V(0)))
    e(v('v_and_b32', vLN, 63, V(0)))
    e(v('v_readfirstlane_b32', sW, V(2)))
    ln = vLN
    t0, t1, t2, t3 = V(48), V(49), V(50), V(51)
    q, g = V(52), V(53)
    e(v('v_lshlrev_b32', vL16, 4, ln))
    e(v('v_add_u32', vL16b, HALF, vL16))
    e(v('v_and_b32', q, 15, ln)); e(v('v_lshrrev_b32', g, 4, ln))
    sj, sn, sblk, shp, sb = S(82), S(83), S(84), S(85), S(86)
    e(s('s_and_b32', sj, S(2), 7)); e(s('s_lshr_b32', sn, S(2), 3))
    e(s('s_lshr_b32', sblk, sj, 2)); e(s('s_and_b32', shp, sj, 3)); e(s('s_lshl_b32', shp, shp, 1))
    e(s('s_lshr_b32', sT, sn, 4)); e(s('s_add_u32', shp, shp, sT)); e(s('s_and_b32', sb, sn, 15))
    e(s('s_and_b32', sPAR, sn, 1)); e(s('s_lshl_b32', sPAR, sPAR, 1))
    e(s('s_lshl_b32', sRING, sW, 14)); e(s('s_add_u32', sRING, sRING, RING0))
    e(s('s_lshl_b32', sWL, sW, 10))
    e(s('s_mul_i32', sLDW, sW, 10240))
    e(s('s_mov_b32', sHEAD, 0)); e(s('s_mov_b32', sVH, 0)); e(s('s_mov_b32', sWQH, 0))
    e(s('s_mov_b32', sC2[0], 0x3DB8AA3B)); e(s('s_mov_b32', sC2[1], 0x3DB8AA3B))
    for k in (1, 2, 3): e(s('s_mov_b32', sST[k], 64512*k))
    for k in range(4): e(s('s_mov_b32', sNX[k], ((k + 2) & 3)*32*8192 + 512))
    r8, ch = V(54), V(55)
    e(v('v_lshrrev_b32', r8, 3, ln)); e(v('v_and_b32', ch, 7, ln))
    e(s('s_and_b32', sT, sW, 1)); e(s('s_lshl_b32', sT2, sT, 2))
    e(v('v_lshrrev_b32', t0, 1, r8)); e(v('v_xor_b32', t0, t0, ch))
    e(v('v_xor_b32', t1, sT2, t0)); e(v('v_lshlrev_b32', t1, 4, t1))
    e(v('v_mul_u32_u24', t2, 896, r8)); e(v('v_add_u32', t1, t1, t2))
    e(s('s_mul_i32', S(87), sW, 7168)); e(v('v_add_u32', vXO, S(87), t1))
    e(v('v_lshlrev_b32', t1, 4, t0)); e(v('v_lshl_add_u32', t1, r8, 9, t1))
    e(s('s_lshl_b32', S(87), sW, 14)); e(v('v_add_u32', vBK, S(87), t1))
    e(v('v_and_b32', t1, 6, r8)); e(v('v_xor_b32', t1, t1, ch)); e(v('v_lshlrev_b32', t1, 4, t1))
    e(v('v_lshl_add_u32', t1, r8, 9, t1))
    e(s('s_lshl_b32', S(87), sW, 7)); e(v('v_add_u32', vBV, S(87), t1))
    e(v('v_and_b32', t1, 2, r8)); e(v('v_lshlrev_b32', t1, 1, t1)); e(v('v_xor_b32', t1, t1, ch))
    e(v('v_lshlrev_b32', t1, 4, t1)); e(v('v_lshl_add_u32', t1, r8, 13, t1))
    e(v('v_add_u32', vBN[0], S(87), t1)); e(v('v_mov_b32', vBN[1], vBN[0]))
    e(so_switch('nx'))
    E.out("s_waitcnt lgkmcnt(0)")
    e(s('s_cmp_eq_u32', sblk, 0))
    for i in range(10): e(s('s_cselect_b32', S(88+i), S(60+i), S(70+i)))
    px, pk, pv, pwq, pwo = S(88, 2), S(90, 2), S(92, 2), S(94, 2), S(96, 2)
    def srd(d, p, offreg, size):
        e(s('s_add_u32', d[0], p[0], offreg)); e(s('s_addc_u32', d[1], p[1], 0)); e(s('s_and_b32', d[1], d[1], 0xffff))
        e(s('s_mov_b32', d[2], size)); e(s('s_mov_b32', d[3], 0x20000))
    e(s('s_mul_i32', S(87), sb, 143360)); srd(sX, px, S(87), 143360)
    e(s('s_lshl_b32', S(87), shp, 10)); srd(sWQ, pwq, S(87), 3670016 - 7*1024)
    e(s('s_mov_b32', S(87), 0)); srd(sWS, S(80, 2), S(87), WS_BYTES)
    if OPT['stamp']:
        e(s('s_lshl_b32', sSTAMP, S(2), 2)); e(s('s_add_u32', sSTAMP, sSTAMP, sW)); e(s('s_lshl_b32', sSTAMP, sSTAMP, 8))
        e(s('s_add_u32', sSTAMP, sSTAMP, STAMP0))
    stamp(E)
    e(s('s_and_b32', S(98), sW, 1))
    e(dma_group('Wq', 0))
    for grp in x_dma(0): e(grp)
    for gi in range(1, 4): e(dma_group('Wq', gi))
    for p in range(1, 4):
        for grp in x_dma(p): e(grp)
    sT1 = S(98)
    e(s('s_lshl_b32', S(87), sb, 3)); e(s('s_add_u32', S(87), S(87), shp)); e(s('s_lshl_b32', S(87), S(87), 19))
    srd(sK, pk, S(87), 524288); srd(sVV, pv, S(87), 524288)
    e(s('s_mul_i32', S(87), shp, 458752)); srd(sWO, pwo, S(87), 458752)
    e(s('s_lshl_b32', S(87), sblk, 4)); e(s('s_add_u32', S(87), S(87), sb)); e(s('s_lshl_b32', S(87), S(87), 3)); e(s('s_add_u32', S(87), S(87), shp))
    e(s('s_mul_i32', sPART, S(87), PART_SZ)); e(s('s_mul_i32', sT2, sW, 35*1024)); e(s('s_add_u32', sPART, sPART, sT2))
    e(v('v_lshrrev_b32', t0, 1, q)); e(v('v_xor_b32', t0, t0, g)); e(v('v_lshlrev_b32', t0, 4, t0))
    e(v('v_lshl_add_u32', t0, q, 7, t0))
    e(v('v_add_u32', vKA[0], sRING, t0)); e(v('v_xor_b32', vKA[1], 64, vKA[0]))
    r, cc = V(56), V(57)
    e(v('v_lshrrev_b32', r, 2, q)); e(v('v_and_b32', cc, 3, ln))
    e(v('v_and_b32', t1, 2, r)); e(v('v_lshlrev_b32', t1, 1, t1)); e(v('v_xor_b32', t1, t1, cc))
    e(v('v_lshlrev_b32', t1, 4, t1)); e(v('v_lshl_add_u32', t1, r, 7, t1)); e(v('v_lshl_add_u32', t1, g, 10, t1))
    e(v('v_add_u32', vWQA0, sRING, t1))
    e(v('v_and_b32', t1, 1, g)); e(v('v_lshl_add_u32', t1, t1, 2, r))
    e(v('v_lshrrev_b32', t2, 1, t1)); e(v('v_lshlrev_b32', t2, 5, t2))
    e(v('v_lshl_add_u32', t2, t1, 7, t2)); e(v('v_lshl_add_u32', t2, cc, 3, t2))
    e(v('v_lshrrev_b32', t3, 1, g)); e(v('v_lshl_add_u32', t2, t3, 10, t2))
    e(v('v_add_u32', vVA[0], sRING, t2))
    for t in range(1, 4): e(v('v_xor_b32', vVA[t], 32*t, vVA[0]))
    e(s('s_mul_i32', S(87), sT1, 20480)); e(v('v_add_u32', vQA[0], S(87), vL16))
    e(s('s_sub_u32', S(87), 20480, S(87))); e(v('v_add_u32', vQA[1], S(87), vL16))
    e(s('s_xor_b32', S(87), sW, sPAR)); e(s('s_mul_i32', sQW, S(87), 20480))
    e(v('v_add_u32', vPW, sLDW, vL16))
    for it in range(4):
        e(s('s_xor_b32', sCOL[it], sT1, it)); e(s('s_xor_b32', sCOL[it], sCOL[it], sPAR)); e(s('s_lshl_b32', sCOL[it], sCOL[it], 7))
    e(v('v_mul_u32_u24', vSTR, 48, q)); e(v('v_add_u32', vSTR, MSTAT, vSTR))
    e(v('v_and_b32', t1, 1, g)); e(v('v_lshlrev_b32', t1, 3, t1)); e(v('v_lshrrev_b32', t2, 1, g))
    e(v('v_lshl_add_u32', t1, t2, 2, t1)); e(v('v_add_u32', vSTW, t1, vSTR))
    e(q_addr_items())

def init_mstat(tmp):
    return [v('v_mov_b32', tmp, 0xff800000)] + [ds_w32(vSTW, tmp, 16*k) for k in range(3)]

RG8 = [1, 2, 5, 6, 9, 10, 13, 14]
RG4 = [1, 5, 9, 13]
DG = [21, 22, 25, 29, 33]

def phase_q(E):
    e = E.emit
    stamp(E)
    def rdB(n):
        ks, j = divmod(n, 10)
        p, u = ks >> 1, ks & 1
        slot = p & 3
        return ds_r128(aB[n & 3], vXA[2*(slot >> 1) + u], (slot & 1)*20480 + 2048*j)
    M = []; fix = {}
    NK = 14
    pre = rd_wq(0, aQ[0]) + [waitvm(('x', 0)), barrier()] + [rdB(n) for n in range(LA)]
    pre += dma_group('Wq', 4, need_lds=('rWq', 0))
    fix[-1] = pre
    for ks in range(NK):
        for j in range(10):
            n = ks*10 + j
            for t in range(4):
                d = pair_tile(t >> 1, j, t & 1)
                M.append(mfma(d, aQ[ks & 1][t], aB[n & 3], d if ks else 0))
            if n + LA < NK*10:
                g = n*4; nn = n + LA
                if nn % 20 == 0:
                    p = nn // 20
                    place(fix, g, [waitvm(('x', p)), waitlds(), barrier()])
                    if p + 3 <= 6:
                        for k, grp in enumerate(x_dma(p+3)): place(fix, g + 12 + 3 + 4*k, grp)
                place(fix, g, rdB(nn))
        if ks + 1 < NK:
            gi = ks + 1; nx = gi + 4
            dm = dma_group('Wq', nx, ('rWq', gi)) if nx < 14 else dma_group('K', nx-14, ('rWq', gi))
            window(fix, ks*40, rd_wq(gi, aQ[(ks+1) & 1]), dm, RG8, DG, 'K' if nx == 14 else None)
    bg = [(42, 70, init_mstat(vT[0]))]
    run_phase(E, M, fix, bg)
    stamp(E)
    e(rd_k(0)); e(rd_k(1))
    e(dma_group('K', 4, ('rK', 0))); e(dma_group('K', 5, ('rK', 1)))
    e(waitlds()); e(barrier())
    for u in range(2):
        for j in range(10):
            r8 = V(pair_tile(u, j, 0).lo, 8)
            e(pack8(r8)); e(ds_w128(vQW, r8.sub(0, 4), u*10240 + j*1024))

def s_tile(hf, tt, j): return pair_tile(2*hf + (tt >> 1), j, tt & 1)

def max_items(hf, j, first):
    L = []
    for tt in range(4):
        tl = s_tile(hf, tt, j)
        if tl.k == 'a':
            tmp = vSUM.sub(4*((j*4+tt) % 3), 4)
            L += [v('v_accvgpr_read_b32', tmp[i], tl[i]) for i in range(4)]; tl = tmp
        for i in (0, 2):
            if first and tt == 0 and i == 0: L.append(v('v_max_f32', vMX[j], tl[0], tl[1]))
            else: L.append(v('v_max3_f32', vMX[j], vMX[j], tl[i], tl[i+1]))
    return L

def xlane(regs, op):
    L = []
    for k in range(5): L.append(v('v_permlane32_swap_b32', regs[2*k], regs[2*k+1]))
    for k in range(5): L.append(v(op, regs[2*k], regs[2*k], regs[2*k+1]))
    for k in range(3): L.append(v('v_permlane16_swap_b32', regs[4*k], regs[4*k+2]))
    for k in range(3): L.append(v(op, regs[4*k], regs[4*k], regs[4*k+2]))
    return L

def exp_exposed(c, j, ones):
    r8 = V(pair_tile(c, j, 0).lo, 8)
    pr, md = bsel(j, 2)
    L = [vpk('v_pk_fma_f32', r8.sub(2*i, 2), r8.sub(2*i, 2), sC2, pr, mods=md) for i in range(4)]
    L += [v('v_exp_f32', r8[i], r8[i]) for i in range(8)]
    L += pack8(r8)
    L.append(ds_w128(vPW, r8.sub(0, 4), (c & 1)*HALF + j*1024))
    for i in range(4):
        L.append(v('v_dot2_f32_bf16', vSUM[j], r8[i], ones, 0 if (c == 0 and i == 0) else vSUM[j]))
    return L

class Blocks:
    def __init__(s): s.free = []; s.held = {}
def exp_bg(B, c, j):
    t0, t1 = pair_tile(c, j, 0), pair_tile(c, j, 1)
    L = []
    if t0.k == 'a':
        b0, b1 = B.free.pop(0), B.free.pop(0)
        L += [v('v_accvgpr_read_b32', b0[i], t0[i]) for i in range(4)] + [v('v_accvgpr_read_b32', b1[i], t1[i]) for i in range(4)]
    else: b0, b1 = t0, t1
    r = [b0[i] for i in range(4)] + [b1[i] for i in range(4)]
    L += [v('v_fma_f32', x, x, sC, vMX[j]) for x in r]
    L += [v('v_exp_f32', x, x) for x in r]
    L += [v('v_add_f32', vSUM[j], vSUM[j], x) for x in r]
    L += [cvt(r[i], r[2*i], r[2*i+1]) for i in range(4)]
    B.held[(c, j)] = b0; B.free.append(b1)
    return L
def wr_bg(B, c, j):
    b0 = B.held.pop((c, j)); B.free.append(b0)
    return [ds_w128(vPW, b0, (c & 1)*HALF + j*1024)]

def head_body(E):
    e = E.emit
    phase_q(E)
    stamp(E)
    def rdQ(n):
        ksn, j = divmod(n, 10); it, u = (ksn >> 1) & 3, ksn & 1
        return ds_r128(aB[n & 3], vQA[it & 1], (it >> 1)*HALF + u*10240 + j*1024)
    M = []; fix = {}
    fix[-1] = [waitlds(), barrier()] + [rdQ(n) for n in range(LA)]
    for un in range(8):
        hf, it = un >> 2, un & 3
        for u in range(2):
            for j in range(10):
                n = (un*2 + u)*10 + j
                for tt in range(4):
                    d = s_tile(hf, tt, j)
                    M.append(mfma(d, FS[un][(u, tt)], aB[n & 3], d if (it or u) else 0))
                if n + LA < 160: place(fix, n*4, rdQ(n+LA))
        if un + 1 < 8:
            for pr in range(2):
                gi = (un+1)*2 + pr; nx = gi + 4
                dm = dma_group('K', nx, ('rK', gi)) if nx < 16 else dma_group('V', nx-16, ('rK', gi))
                window(fix, un*80 + pr*40, rd_k(gi), dm, RG4, DG, 'V' if nx == 16 else None)
    window(fix, 7*80, rd_v(0, aPV[0]), dma_group('V', 4, ('rV', 0)), RG8, DG)
    items = []
    for j in range(10): items += max_items(0, j, True)
    bg = [(324, 590, items)]
    run_phase(E, M, fix, bg)
    stamp(E)
    for j in range(10): e(max_items(1, j, False))
    e(xlane(vMX, 'v_max_f32'))
    for k in range(3): e(ds_maxf(vSTW, vMX[4*k], 16*k))
    e(s('s_cmp_eq_u32', sHEAD, 0))
    E.out("s_cbranch_scc1 L_nx_done")
    for i in range(3): e(s('s_mov_b32', sWQ[i], sWO[i]))
    for gi in range(4): e(s('s_mov_b32', sNX[gi], wo_soff(gi)))
    for k in (1, 2, 3): e(s('s_mov_b32', sST[k], 2560*k))
    t0, t1 = vSUM[0], vSUM[1]
    e(v('v_lshrrev_b32', t0, 4, vLN)); e(v('v_lshlrev_b32', t1, 5, t0)); e(v('v_and_b32', vBN[0], 0xf0, vL16))
    e(v('v_xor_b32', t1, t1, vBN[0])); e(v('v_xor_b32', vBN[1], 128, t1))
    e(v('v_mul_u32_u24', t0, 896, t0))
    e(s('s_mul_i32', sT, sW, 224)); e(s('s_and_b32', sT, sT, 0xffffffc0))
    e(v('v_add_u32', t0, sT, t0))
    e(v('v_add_u32', vBN[0], t0, t1)); e(v('v_add_u32', vBN[1], t0, vBN[1]))
    E.label("L_nx_done")
    ones = vSUM[11]
    e(v('v_mov_b32', ones, 0x3f803f80))
    e(waitlds()); e(barrier())
    for k in range(3): e(ds_r128(vMX.sub(4*k, 4), vSTR, 16*k))
    for j in range(10): e(I(f"v_mul_f32 {vMX[j]}, {sC}, -{vMX[j]}", 'valu', rd=regset(vMX[j], sC), wr=vMX[j].set))
    for c in range(2):
        for j in range(10): e(exp_exposed(c, j, ones))
    stamp(E)
    def rdP(n):
        ks, j = divmod(n, 10); c, w2 = ks >> 2, ks & 3
        return ds_r128(aB[n & 3], vL16b if (c & 1) else vL16, (w2*10 + j)*1024)
    M = []; fix = {}; bg = []
    fix[-1] = [waitlds(), barrier()] + [rdP(n) for n in range(LA)]
    for ks in range(16):
        for j in range(10):
            n = ks*10 + j
            for t in range(4):
                d = pair_tile(t >> 1, j, t & 1)
                M.append(mfma(d, aPV[ks & 1][t], aB[n & 3], d if ks else 0))
            if n + LA < 160:
                if (n + LA) % 40 == 0: place(fix, n*4, [waitlds(), barrier()])
                place(fix, n*4, rdP(n+LA))
        if ks + 1 < 16:
            gi = ks + 1; nx = gi + 4
            dm = dma_group('V', nx, ('rV', gi)) if nx < 16 else dma_group('nx', nx-16, ('rV', gi))
            window(fix, ks*40, rd_v(gi, aPV[(ks+1) & 1]), dm, RG8, DG, 'nx' if nx == 16 else None)
    bar = lambda c: c*160 - 4*LA
    B = Blocks()
    it0 = []
    for j in range(7): it0 += exp_bg(B, 2, j)
    bg.append((0, bar(1) - 1, it0))
    it1 = []
    wq = [wr_bg(B, 2, j) for j in range(7)]
    for j in range(7, 10):
        it1 += wq.pop(0) + wq.pop(0)
        it1 += exp_bg(B, 2, j) + wr_bg(B, 2, j)
    it1 += wq.pop(0)
    for j in range(4): it1 += exp_bg(B, 3, j)
    bg.append((bar(1) + 1, bar(2) - 1, it1))
    it2 = []
    for j in range(4, 10):
        if j - 4 < 4: it2 += wr_bg(B, 3, j - 4)
        it2 += exp_bg(B, 3, j) + wr_bg(B, 3, j)
    it2 += xlane(vSUM, 'v_add_f32')
    tb = V(208, 48)
    it2 += link([s('s_mul_i32', sT2, sW, 768), v('v_add_u32', vSUM[1], sT2, vSTW)])
    for k in range(3): it2.append(ds_w32(vSUM[1], vSUM[4*k], SSTAT - MSTAT + 16*k))
    bg.append((bar(2) + 1, bar(3) - 1, it2))
    it3 = []
    for w2 in range(4):
        for k in range(3): it3.append(ds_r128(tb.sub(12*w2 + 4*k, 4), vSTR, SSTAT - MSTAT + 768*w2 + 16*k))
    it3 += q_addr_items()
    for j in range(10):
        it3.append(v('v_add_f32', tb[j], tb[j], tb[12+j])); it3.append(v('v_add_f32', tb[24+j], tb[24+j], tb[36+j]))
        it3.append(v('v_add_f32', tb[j], tb[j], tb[24+j])); it3.append(v('v_rcp_f32', vMX[j], tb[j]))
    bg.append((bar(3) + 4, 620, it3))
    for p in range(2):
        for k, grp in enumerate(x_dma(p)): place(fix, 480 + 40*p + 3 + 4*k, grp)
    run_phase(E, M, fix, bg)
    stamp(E)

def o_convert(E, sink):
    e = E.emit
    for u in range(2):
        for j in range(10):
            r8 = V(pair_tile(u, j, 0).lo, 8)
            pr, md = bsel(j, 1)
            for i in range(4): e(vpk('v_pk_mul_f32', r8.sub(2*i, 2), r8.sub(2*i, 2), pr, mods=md))
            e(pack8(r8))
            e(sink(u, j, r8.sub(0, 4)))

def tail0(E):
    e = E.emit
    e(waitlds()); e(barrier())
    for p in (2, 3):
        for grp in x_dma(p): e(grp)
    o_convert(E, lambda u, j, r: [v('v_accvgpr_write_b32', aPARK[u][j][i], r[i]) for i in range(4)])
    e(s('s_mov_b32', sHEAD, 1)); e(s('s_add_u32', sVH, sVH, 262144)); e(s('s_mov_b32', sWQH, 512))
    for i in range(4): e(s('s_add_u32', sCOL[i], sCOL[i], 262144))
    E.settle()

def phase_o(E):
    e = E.emit
    e(waitvm(('x', 1))); e(waitlds()); e(barrier())
    o_convert(E, lambda u, j, r: ds_w128(vPW, r, u*HALF + j*1024))
    ln = vLN; t0, t1, t2, t3 = vT[0], vT[1], vT[2], vT[3]
    e(v('v_lshrrev_b32', t0, 4, ln))
    e(v('v_bfe_u32', t1, ln, 2, 2))
    e(v('v_and_b32', t2, 1, t0)); e(v('v_lshl_add_u32', t2, t2, 2, t1))
    e(v('v_lshlrev_b32', t0, 10, t0)); e(v('v_lshl_add_u32', t0, t1, 8, t0))
    e(v('v_and_b32', t1, 3, ln)); e(v('v_lshl_add_u32', t0, t1, 3, t0)); e(v('v_add_u32', t0, sRING, t0))
    e(s('s_and_b32', sT, sW, 1))
    for t in range(7):
        e(s('s_add_u32', sT2, sT, t)); e(v('v_xor_b32', t3, sT2, t2)); e(v('v_lshl_add_u32', vWOA[t], t3, 5, t0))
    stamp(E)
    def rdO(n):
        ks, j = divmod(n, 10); c, w2 = ks >> 2, ks & 3
        return ds_r128(aB[n & 3], vL16b if (c & 1) else vL16, (w2*10 + j)*1024)
    M = []; fix = {}; bg = []
    pre = rd_wo(0, aO[0]) + rd_wo(1, aO[0])
    pre += dma_group('Wo', 4, ('rWo', 0)) + dma_group('Wo', 5, ('rWo', 1))
    pre += [waitlds(), barrier()] + [rdO(n) for n in range(LA)]
    fix[-1] = pre
    RG7 = [1, 2, 4, 5, 8, 9, 11]
    DG7 = [17, 18, 20, 23, 26]
    for ks in range(16):
        for j in range(10):
            n = ks*10 + j
            for t in range(7):
                d = acc_tile(t*10 + j)
                M.append(mfma(d, aO[ks & 1][t], aB[n & 3], d if ks else 0))
            if n + LA < 160:
                nn = n + LA
                if nn % 40 == 0:
                    c = nn // 40
                    place(fix, n*7, [waitlds(), barrier()])
                    if c in (1, 2):
                        u = c - 1
                        bg.append((n*7 + 2, n*7 + 240, [ds_w128(vPW, aPARK[u][j2], u*HALF + j2*1024) for j2 in range(10)]))
                place(fix, n*7, rdO(nn))
        if ks + 1 < 16:
            for hh in range(2):
                gi = (ks+1)*2 + hh; nx = gi + 4
                dm = dma_group('Wo', nx, ('rWo', gi)) if nx < 32 else None
                window(fix, ks*70 + hh*35, rd_wo(gi, aO[(ks+1) & 1]), dm, RG7, DG7)
    run_phase(E, M, fix, bg)
    stamp(E)
    tm = [V(24, 8), V(32, 8)]
    k = 0
    for t in range(7):
        for jp in range(5):
            t0, t1 = acc_tile(t*10 + 2*jp), acc_tile(t*10 + 2*jp + 1)
            if t0.k == 'a':
                r8 = tm[k & 1]; k += 1
                for i in range(8): e(v('v_accvgpr_read_b32', r8[i], (t0, t1)[i >> 2][i & 3]))
            else: r8 = V(t0.lo, 8)
            e(pack8(r8))
            o = (t*5 + jp)*1024
            if o & 4095 == 0: e(s('s_add_u32', sT2, sPART, o))
            e(bstore4(r8.sub(0, 4), vL16, sWS, sT2, o & 4095, OPT['partst'], tag='part'))
    if OPT['stamp']:
        e(waitvm('ALL'))
        stamp(E)
    E.out("s_endpgm")

def rename(vm, f):
    return [dict(x, tag=f(x['tag'][1])) if isinstance(x['tag'], tuple) and x['tag'][0] == 'nx' else dict(x) for x in vm]

def gen_main():
    E = Emitter()
    prologue(E)
    E.emit(waitlds())
    E.settle()
    entryA = copy.deepcopy(E.vm)
    D = Emitter(); D.vm = copy.deepcopy(entryA); D.sites = []
    head_body(D); sitesA = D.sites; endA = copy.deepcopy(D.vm); D.sites = None
    tail0(D); entryB = rename(D.vm, lambda k: ('Wq', (k + 2) & 3))
    D = Emitter(); D.vm = copy.deepcopy(entryB); D.sites = []
    head_body(D); sitesB = D.sites; endB = copy.deepcopy(D.vm)
    assert [x['tag'] for x in endA] == [x['tag'] for x in endB]
    forced = [min([x for x in (a, b) if x is not None], default=None) for a, b in zip(sitesA, sitesB)]
    E.label("L_head")
    E.forced = forced; E.site_i = 0
    head_body(E)
    E.forced = None
    endvm = copy.deepcopy(endA); endlg = copy.deepcopy(E.lg)
    E.vm = copy.deepcopy(endvm)
    E.emit(s('s_cmp_eq_u32', sHEAD, 0))
    E.out("s_cbranch_scc0 L_ophase")
    tail0(E)
    E.out("s_branch L_head")
    E.label("L_ophase")
    E.vm = rename(endvm, lambda k: ('Wo', k)); E.lg = endlg
    E.settle()
    phase_o(E)
    return E

def gen_reduce():
    E = Emitter(); e = E.emit
    E.out("s_cmp_ge_u32 s2, 1120"); E.out("s_cbranch_scc0 L_red_go"); E.out("s_endpgm"); E.label("L_red_go")
    E.out("s_load_dwordx2 s[4:5], s[0:1], 80")
    E.out("s_load_dwordx2 s[6:7], s[0:1], 96")
    e(v('v_lshrrev_b32', V(2), 6, V(0))); e(v('v_and_b32', V(0), 63, V(0))); e(v('v_readfirstlane_b32', S(3), V(2)))
    e(v('v_lshlrev_b32', V(1), 4, V(0)))
    e(s('s_mov_b32', S(16), (2**32 + 34)//35)); E.out("s_mul_hi_u32 s17, s2, s16")
    e(s('s_mul_i32', S(18), S(17), 35)); e(s('s_sub_u32', S(18), S(2), S(18)))
    e(s('s_mul_i32', S(19), S(17), 8*PART_SZ)); e(s('s_mul_i32', S(20), S(3), 35)); e(s('s_add_u32', S(20), S(20), S(18)))
    e(s('s_lshl_b32', S(20), S(20), 10)); e(s('s_add_u32', S(19), S(19), S(20)))
    e(s('s_mul_i32', S(21), S(18), 52)); e(s('s_lshr_b32', S(21), S(21), 8)); e(s('s_mul_i32', S(22), S(21), 5)); e(s('s_sub_u32', S(22), S(18), S(22)))
    e(s('s_and_b32', S(23), S(17), 15)); e(s('s_lshr_b32', S(24), S(17), 4))
    e(s('s_mul_i32', S(23), S(23), 160)); e(s('s_lshl_b32', S(22), S(22), 5)); e(s('s_add_u32', S(23), S(23), S(22)))
    e(s('s_mul_i32', S(23), S(23), 1792)); e(s('s_mul_i32', S(24), S(24), 896)); e(s('s_add_u32', S(23), S(23), S(24)))
    e(s('s_mul_i32', S(24), S(3), 224)); e(s('s_add_u32', S(23), S(23), S(24))); e(s('s_lshl_b32', S(21), S(21), 5)); e(s('s_add_u32', S(23), S(23), S(21)))
    e(v('v_and_b32', V(2), 15, V(0))); e(v('v_mul_u32_u24', V(2), 1792, V(2)))
    e(v('v_lshrrev_b32', V(3), 4, V(0))); e(v('v_lshl_add_u32', V(2), V(3), 3, V(2)))
    E.out("s_waitcnt lgkmcnt(0)")
    e(s('s_mov_b32', S(8), S(4))); e(s('s_and_b32', S(9), S(5), 0xffff)); e(s('s_mov_b32', S(10), 4587520)); e(s('s_mov_b32', S(11), 0x20000))
    e(s('s_mov_b32', S(12), S(6))); e(s('s_and_b32', S(13), S(7), 0xffff)); e(s('s_mov_b32', S(14), PARK0)); e(s('s_mov_b32', S(15), 0x20000))
    for h in range(8):
        e(bload(4, V(8+4*h, 4), V(1), S(12, 4), S(19), 0, OPT['redld']))
        if h < 7: e(s('s_add_u32', S(19), S(19), PART_SZ))
    acc = V(40, 8)
    for h in range(8):
        for i in range(4):
            src = V(8+4*h+i)
            if h == 0:
                e(v('v_lshlrev_b32', acc[2*i], 16, src)); e(v('v_and_b32', acc[2*i+1], 0xffff0000, src))
            else:
                e(v('v_lshlrev_b32', V(4), 16, src)); e(v('v_and_b32', V(5), 0xffff0000, src))
                e(v('v_add_f32', acc[2*i], acc[2*i], V(4))); e(v('v_add_f32', acc[2*i+1], acc[2*i+1], V(5)))
    e(pack8(acc))
    e(bstore(2, acc.sub(0, 2), V(2), S(8, 4), S(23), 0))
    e(s('s_add_u32', S(23), S(23), 16*1792))
    e(bstore(2, acc.sub(2, 2), V(2), S(8, 4), S(23), 0))
    E.out("s_endpgm")
    return E

def kd(name, vgpr, accoff, sgpr):
    return f""".amdhsa_kernel {name}
  .amdhsa_next_free_vgpr {vgpr}
  .amdhsa_next_free_sgpr {sgpr}
  .amdhsa_accum_offset {accoff}
  .amdhsa_group_segment_fixed_size 0
  .amdhsa_kernarg_size 104
  .amdhsa_user_sgpr_count 2
  .amdhsa_user_sgpr_kernarg_segment_ptr 1
  .amdhsa_system_sgpr_workgroup_id_x 1
.end_amdhsa_kernel
"""

def main():
    ref = open(f"cdna_kernels/{NAME}.s.ref").read().splitlines()
    hdr = [l for l in ref[:14] if l.startswith(";") and "@launch" not in l]
    Em = gen_main(); Er = gen_reduce()
    out = hdr + [
        "; Generated by a hand-written python generator (fused Q-proj + attention + out-proj partials, then a reduce).",
        f"; @launch kernel=mha_main_kernel grid=(256,1,1) block=(256,1,1) lds={LDS_BYTES}",
        "; @launch kernel=mha_reduce_kernel grid=(1120,1,1) block=(256,1,1) lds=0",
        '.amdgcn_target "amdgcn-amd-amdhsa--gfx950"', ".text",
        ".globl mha_main_kernel", ".p2align 8", ".type mha_main_kernel,@function", "mha_main_kernel:"]
    out += Em.lines
    out += [".globl mha_reduce_kernel", ".p2align 8", ".type mha_reduce_kernel,@function", "mha_reduce_kernel:"]
    out += Er.lines
    out += ['.section .rodata,"a"', ".p2align 6", kd("mha_main_kernel", 512, 256, 102), ".p2align 6", kd("mha_reduce_kernel", 48, 48, 32)]
    path = OPT.get('out') or f"cdna_kernels/{NAME}.s"
    open(path, "w").write("\n".join(out) + "\n")
    print("wrote", path, "lines", len(out), Em.count, file=sys.stderr)

OPT.setdefault('out', '')
if __name__ == "__main__":
    main()
```
